```python
import torch

def _softmax(x, axis=-1):
    return torch.softmax(x, dim=axis)
def _gelu(x):
    return torch.nn.functional.gelu(x, approximate="tanh")
def _silu(x):
    return torch.nn.functional.silu(x)
def _sigmoid(x):
    return torch.sigmoid(x)
def _layernorm(x, axis=-1, eps=1e-5):
    m = x.mean(dim=axis, keepdim=True)
    v = x.var(dim=axis, keepdim=True, unbiased=False)
    return (x - m) / torch.sqrt(v + eps)
def _scatter_add(tgt, idx, src, axis=0):
    return tgt.clone().index_add_(axis, idx, src)
def _segment_sum(src, seg, n):
    out = torch.zeros((n,) + src.shape[1:], dtype=src.dtype)
    return out.index_add_(0, seg, src)
def _pad(x, pw):
    flat = tuple(v for pair in reversed(pw) for v in pair)
    return torch.nn.functional.pad(x, flat)

kernel_name = 'recurrent_scan__sliding_block_cached__mixer_token_mlp__prompt'

def setup_inputs():

    _w = (lambda a: (lambda t: t.to(torch.bfloat16) if t.is_floating_point() else t)(torch.as_tensor(a)))
    def _A_setup():
        B, Sq, D = 1, 2048, 512
        Hq, Hkv, Sk, Dh = 32, 8, 2048, 128
        assert Hq % Hkv == 0, (Hq, Hkv)
        return {
            "x": _w((lambda *s: torch.randn(*s, dtype=torch.bfloat16) * 0.05)(B, Sq, D)),
            "k_cache": _w((lambda *s: torch.randn(*s, dtype=torch.bfloat16) * 1.6)(B, Hkv, Sk, Dh)),
            "v_cache": _w((lambda *s: torch.randn(*s, dtype=torch.bfloat16) * 0.8)(B, Hkv, Sk, Dh)),
            "wq": _w((lambda *s: torch.randn(*s, dtype=torch.bfloat16) * 1.6)(D, Hq * Dh) * (D ** -0.5)),
            "wo": _w((lambda *s: torch.randn(*s, dtype=torch.bfloat16) * 0.8)(Hq * Dh, D) * ((Hq * Dh) ** -0.5)),
        }
    _A_in = _A_setup()

    def _B_setup():
        B, S, D, F = 1, 2048, 512, 1792
        return {
            "x": _w((lambda *s: torch.randn(*s, dtype=torch.bfloat16) * 0.05)(B, S, D)),
            "w1": _w((lambda *s: torch.randn(*s, dtype=torch.bfloat16) * 1.6)(S, F) * (S ** -0.5)),
            "b1": _w((lambda *s: torch.randn(*s, dtype=torch.bfloat16) * 1.6)(F) * 0.02),
            "w2": _w((lambda *s: torch.randn(*s, dtype=torch.bfloat16) * 0.2)(F, S) * (F ** -0.5)),
            "b2": _w((lambda *s: torch.randn(*s, dtype=torch.bfloat16) * 0.2)(S) * 0.02),
        }
    _B_in = _B_setup()

    return {
        "A_x": _A_in["x"],
        "A_k_cache": _A_in["k_cache"],
        "A_v_cache": _A_in["v_cache"],
        "A_wq": _A_in["wq"],
        "A_wo": _A_in["wo"],
        "B_x": _B_in["x"],
        "B_w1": _B_in["w1"],
        "B_b1": _B_in["b1"],
        "B_w2": _B_in["w2"],
        "B_b2": _B_in["b2"],
    }

def reference(A_x, A_k_cache, A_v_cache, A_wq, A_wo, B_x, B_w1, B_b1, B_w2, B_b2):
    def _A_ref(x, k_cache, v_cache, wq, wo):
        B, Sq, D = x.shape
        Hq, Dh = 32, 128
        Hkv, Sk = k_cache.shape[1], k_cache.shape[2]
        W = min(4096, max(256, Sk // 4))
        rep = Hq // Hkv
        q = (lambda x, *d: x.permute(*d))((x @ wq).reshape(B, Sq, Hq, Dh), 0, 2, 1, 3)
        k = (lambda x, n, axis: torch.repeat_interleave(x, n, dim=axis))(k_cache[:, :, Sk - W:, :], rep, axis=1)
        v = (lambda x, n, axis: torch.repeat_interleave(x, n, dim=axis))(v_cache[:, :, Sk - W:, :], rep, axis=1)
        scores = torch.einsum("bhqd,bhkd->bhqk", q, k) * (Dh ** -0.5)
        p = _softmax(scores, axis=-1)
        o = torch.einsum("bhqk,bhkd->bhqd", p, v)
        return (lambda x, *d: x.permute(*d))(o, 0, 2, 1, 3).reshape(B, Sq, Hq * Dh) @ wo

    def _B_ref(x, w1, b1, w2, b2):
        B, S, D = x.shape
        h = _layernorm(x, axis=-1)
        u = torch.einsum("bsd,sf->bdf", h, w1) + b1
        u = _gelu(u)
        y = torch.einsum("bdf,fs->bds", u, w2) + b2
        return (lambda x, *d: x.permute(*d))(y, 0, 2, 1)

    x = A_x
    xn = _layernorm(x, axis=-1)
    s = _A_ref(xn, A_k_cache, A_v_cache, A_wq, A_wo)
    g = _silu(_B_ref(xn, B_w1, B_b1, B_w2, B_b2))
    return x + s * g
```

```python
import re

def _regs(tok):
    tok = tok.strip()
    tok = tok.lstrip('-')
    m = re.fullmatch(r'abs\((.*)\)', tok)
    if m: tok = m.group(1)
    m = re.fullmatch(r'([vsa])(\d+)', tok)
    if m: return [(m.group(1), int(m.group(2)))]
    m = re.fullmatch(r'([vsa])\[(\d+):(\d+)\]', tok)
    if m: return [(m.group(1), i) for i in range(int(m.group(2)), int(m.group(3)) + 1)]
    if tok == 'vcc': return [('s', 106), ('s', 107)]
    if tok == 'm0': return [('s', 124)]
    if tok == 'exec': return [('s', 126), ('s', 127)]
    return []

TRANS = ('v_exp_f32', 'v_log_f32', 'v_rcp_f32', 'v_rsq_f32', 'v_sqrt_f32', 'v_sin_f32', 'v_cos_f32')

class Inst:
    __slots__ = ('text', 'mn', 'reads', 'writes', 'kind', 'srcc', 'ab', 'dpp', 'lds_dma', 'nstates')
    def __init__(self, text):
        self.text = text
        body = text.split(';')[0].strip()
        parts = body.split(None, 1)
        self.mn = mn = parts[0]
        rest = parts[1] if len(parts) > 1 else ''
        mm = re.search(r'\s(offen|offset\d?:|lds\b|quad_perm|row_|sc0|sc1|nt\b|op_sel|wave_|bank_mask|bound_ctrl|idxen|neg_lo|neg_hi)', rest)
        mods = ''
        if mm:
            mods = rest[mm.start():]; rest = rest[:mm.start()]
        ops = [o.strip() for o in rest.split(',')] if rest.strip() else []
        self.reads = set(); self.writes = set(); self.srcc = set(); self.ab = set()
        self.dpp = ('quad_perm' in mods or 'row_' in mods or 'wave_' in mods)
        self.lds_dma = False
        self.nstates = 1
        R = lambda t: set(_regs(t))
        if mn.startswith('v_mfma'):
            self.kind = 'mfma'
            self.writes = R(ops[0]); self.ab = R(ops[1]) | R(ops[2]); self.srcc = R(ops[3])
            self.reads = self.ab | self.srcc
        elif mn.startswith('v_cmp'):
            self.kind = 'valu'
            self.writes = R(ops[0])
            for o in ops[1:]: self.reads |= R(o)
        elif mn.startswith('v_permlane'):
            self.kind = 'valu'
            self.writes = R(ops[0]) | R(ops[1]); self.reads = set(self.writes)
        elif mn.startswith('v_'):
            self.kind = 'valu'
            self.writes = R(ops[0])
            for o in ops[1:]: self.reads |= R(o)
            if mn.startswith('v_fmac') or mn.startswith('v_pk_fmac'): self.reads |= self.writes
            if mn.startswith('v_cndmask') and len(ops) == 3: self.reads |= R('vcc')
        elif mn.startswith('ds_read') or mn.startswith('ds_bpermute') or mn.startswith('ds_swizzle'):
            self.kind = 'dsr'
            self.writes = R(ops[0])
            for o in ops[1:]: self.reads |= R(o)
        elif mn.startswith('ds_write'):
            self.kind = 'dsw'
            for o in ops: self.reads |= R(o)
        elif mn.startswith('buffer_load') or mn.startswith('global_load'):
            if re.search(r'\blds\b', mods):
                self.kind = 'dma'; self.lds_dma = True
                for o in ops: self.reads |= R(o)
                self.reads |= R('m0')
            else:
                self.kind = 'vld'
                self.writes = R(ops[0])
                for o in ops[1:]: self.reads |= R(o)
        elif mn.startswith('buffer_store') or mn.startswith('global_store'):
            self.kind = 'vst'
            for o in ops: self.reads |= R(o)
        elif mn == 's_nop':
            self.kind = 'nop'; self.nstates = int(ops[0], 0) + 1
        elif mn == 's_waitcnt':
            self.kind = 'wait'
        elif mn.startswith('s_load') or mn.startswith('s_memtime'):
            self.kind = 'smem'
            self.writes = R(ops[0])
            for o in ops[1:]: self.reads |= R(o)
        elif mn.startswith('s_'):
            self.kind = 'salu'
            if mn.startswith('s_cmp') or mn.startswith('s_cbranch') or mn in ('s_barrier', 's_branch', 's_endpgm', 's_setprio', 's_sleep'):
                for o in ops: self.reads |= R(o)
            else:
                self.writes = R(ops[0])
                for o in ops[1:]: self.reads |= R(o)
        else:
            raise ValueError("unknown instruction: " + text)

class Prog:
    def __init__(self):
        self.items = []
    def I(self, text):
        self.items.append(Inst(text))
    def L(self, text):
        self.items.append(text)
    def C(self, text):
        self.items.append('    ; ' + text)

    def finalize(self):
        out = []
        lgkm = []
        vm = []
        hist = []
        def emit(inst):
            out.append('    ' + inst.text)
            hist.append(inst)
            if len(hist) > 40: hist.pop(0)
        def dist_ok(inst):
            need = 0
            d = 0
            for p in reversed(hist):
                req = 0
                vw = {r for r in p.writes if r[0] in 'va'}
                sw = {r for r in p.writes if r[0] == 's'}
                touch = inst.reads | inst.writes
                if p.kind == 'mfma':
                    if inst.kind == 'mfma':
                        if p.writes & inst.ab: req = max(req, 12)
                        if p.writes & inst.srcc and p.writes != inst.srcc: req = max(req, 10)
                        if p.writes & inst.writes and p.writes != inst.srcc: req = max(req, 12)
                    elif inst.kind in ('valu', 'dsr', 'dsw', 'vld', 'vst', 'dma'):
                        if p.writes & touch: req = max(req, 12)
                        if inst.kind in ('valu', 'dsr', 'vld') and (p.srcc & inst.writes): req = max(req, 7)
                elif p.kind == 'valu':
                    if inst.kind == 'mfma' and (vw & inst.reads): req = max(req, 2)
                    if inst.kind == 'valu':
                        if (inst.dpp or inst.mn.startswith('v_permlane')) and (vw & inst.reads): req = max(req, 2)
                        if inst.mn.startswith('v_readfirstlane') or inst.mn.startswith('v_readlane'):
                            if vw & inst.reads: req = max(req, 1)
                        if p.mn in TRANS and (vw & inst.reads): req = max(req, 1)
                        if sw & inst.reads: req = max(req, 2)
                    if inst.kind in ('vld', 'vst', 'dma') and (sw & inst.reads): req = max(req, 5)
                    if inst.kind == 'salu' and (sw & inst.reads): req = max(req, 1)
                elif p.kind == 'salu':
                    if ('s', 124) in p.writes and inst.kind == 'dma': req = max(req, 1)
                elif p.kind == 'vst':
                    if inst.kind in ('valu', 'dsr', 'vld', 'mfma') and ({r for r in p.reads if r[0] == 'v'} & inst.writes): req = max(req, 2)
                if req > d: need = max(need, req - d)
                d += p.nstates
                if d >= 20: break
            return need
        for it in self.items:
            if isinstance(it, str):
                out.append(it)
                if it.strip().endswith(':'):
                    assert not lgkm, "pending LDS ops at label " + it
                continue
            inst = it
            if inst.kind == 'wait':
                m = re.search(r'lgkmcnt\((\d+)\)', inst.text)
                if m:
                    n = int(m.group(1));
                    while len(lgkm) > n: lgkm.pop(0)
                m = re.search(r'vmcnt\((\d+)\)', inst.text)
                if m:
                    n = int(m.group(1))
                    while len(vm) > n: vm.pop(0)
                emit(inst); continue
            touch = inst.reads | inst.writes
            k = -1
            for i, d in enumerate(lgkm):
                if d & touch: k = i
            wl = None
            if k >= 0:
                wl = min(len(lgkm) - 1 - k, 15)
                while len(lgkm) > wl: lgkm.pop(0)
            k = -1
            for i, d in enumerate(vm):
                if d & touch: k = i
            wv = None
            if k >= 0:
                wv = min(len(vm) - 1 - k, 63)
                while len(vm) > wv: vm.pop(0)
            if wl is not None or wv is not None:
                t = 's_waitcnt'
                if wv is not None: t += f' vmcnt({wv})'
                if wl is not None: t += f' lgkmcnt({wl})'
                emit(Inst(t))
            n = dist_ok(inst)
            while n > 0:
                c = min(n, 16)
                emit(Inst(f's_nop {c-1}'))
                n -= c
            emit(inst)
            if inst.kind == 'dsr': lgkm.append(set(inst.writes))
            elif inst.kind == 'dsw': lgkm.append(set())
            elif inst.kind == 'vld': vm.append(set(inst.writes))
            elif inst.kind in ('vst', 'dma'): vm.append(set())
            if inst.mn == 's_barrier':
                pass
        return '\n'.join(out) + '\n'
```

```python
import sys, math
sys.path.insert(0, 'gen')
from asmgen import Prog

WS_XN = 0
WS_H = 2 << 20
WS_U = 4 << 20
WS_PART = 8 << 20
U_BYTES = 512 * 1792 * 2

LOG2E = 1.4426950408889634
def f32hex(x):
    import struct
    return '0x%08x' % struct.unpack('<I', struct.pack('<f', x))[0]

def vr(a, n=1):
    return f'v{a}' if n == 1 else f'v[{a}:{a+n-1}]'

def srd(p, d, lo, hi, nbytes, add=0):
    if add:
        p.I(f's_add_u32 s{d}, s{lo}, {add}')
        p.I(f's_addc_u32 s{d+1}, s{hi}, 0')
        p.I(f's_and_b32 s{d+1}, s{d+1}, 0xffff')
    else:
        p.I(f's_mov_b32 s{d}, s{lo}')
        p.I(f's_and_b32 s{d+1}, s{hi}, 0xffff')
    p.I(f's_mov_b32 s{d+2}, {nbytes}')
    p.I(f's_mov_b32 s{d+3}, 0x20000')

def allreduce(p, op, v, t):
    p.I(f'{op}_dpp v{v}, v{v}, v{v} quad_perm:[1,0,3,2] row_mask:0xf bank_mask:0xf')
    p.I(f'{op}_dpp v{v}, v{v}, v{v} quad_perm:[2,3,0,1] row_mask:0xf bank_mask:0xf')
    p.I(f'{op}_dpp v{v}, v{v}, v{v} row_half_mirror row_mask:0xf bank_mask:0xf')
    p.I(f'{op}_dpp v{v}, v{v}, v{v} row_mirror row_mask:0xf bank_mask:0xf')
    p.I(f'v_mov_b32 v{t}, v{v}')
    p.I(f'v_permlane16_swap_b32 v{v}, v{t}')
    p.I(f'{op} v{v}, v{v}, v{t}')
    p.I(f'v_mov_b32 v{t}, v{v}')
    p.I(f'v_permlane32_swap_b32 v{v}, v{t}')
    p.I(f'{op} v{v}, v{v}, v{t}')

def gen_ln():
    p = Prog()
    p.I('s_cmp_ge_u32 s2, 512')
    p.I('s_cbranch_scc1 L_ln_done')
    p.I('s_load_dwordx2 s[4:5], s[0:1], 0')
    p.I('s_load_dwordx2 s[6:7], s[0:1], 96')
    p.I('v_lshrrev_b32 v1, 6, v0')
    p.I('v_and_b32 v2, 63, v0')
    p.I('s_lshl_b32 s3, s2, 2')
    p.I('v_add_u32 v1, s3, v1')
    p.I('v_lshlrev_b32 v1, 10, v1')
    p.I('v_lshl_add_u32 v1, v2, 4, v1')
    p.I('s_waitcnt lgkmcnt(0)')
    srd(p, 8, 4, 5, 2 << 20)
    srd(p, 12, 6, 7, 4 << 20)
    p.I('buffer_load_dwordx4 v[8:11], v1, s[8:11], 0 offen')
    p.I('s_mov_b32 s16, 0xffff0000')
    p.I(f's_mov_b32 s17, {f32hex(1.0/512)}')
    p.I(f's_mov_b32 s18, {f32hex(1e-5)}')
    E = 16
    def unpack(src):
        for i in range(4):
            p.I(f'v_lshlrev_b32 v{E+2*i}, 16, v{src+i}')
            p.I(f'v_and_b32 v{E+2*i+1}, s16, v{src+i}')
    def rb(v):
        p.I(f'v_cvt_pk_bf16_f32 v{v}, v{v}, v{v}')
        p.I(f'v_lshlrev_b32 v{v}, 16, v{v}')
    def ln(dst):
        p.I(f'v_add_f32 v3, v{E}, v{E+1}')
        for i in range(2, 8): p.I(f'v_add_f32 v3, v3, v{E+i}')
        allreduce(p, 'v_add_f32', 3, 4)
        p.I('v_mul_f32 v3, s17, v3')
        for i in range(8): p.I(f'v_sub_f32 v{24+i}, v{E+i}, v3')
        p.I('v_mul_f32 v5, v24, v24')
        for i in range(1, 8): p.I(f'v_fmac_f32 v5, v{24+i}, v{24+i}')
        allreduce(p, 'v_add_f32', 5, 4)
        p.I('v_mul_f32 v5, s17, v5')
        rb(3); rb(5)
        p.I('v_add_f32 v5, s18, v5'); rb(5)
        p.I('v_sqrt_f32 v5, v5'); rb(5)
        p.I('v_rcp_f32 v5, v5')
        for i in range(8): p.I(f'v_sub_f32 v{24+i}, v{E+i}, v3')
        for i in range(4): p.I(f'v_cvt_pk_bf16_f32 v{32+i}, v{24+2*i}, v{24+2*i+1}')
        for i in range(4):
            p.I(f'v_lshlrev_b32 v{24+2*i}, 16, v{32+i}')
            p.I(f'v_and_b32 v{24+2*i+1}, s16, v{32+i}')
        for i in range(8): p.I(f'v_mul_f32 v{24+i}, v{24+i}, v5')
        for i in range(4): p.I(f'v_cvt_pk_bf16_f32 v{dst+i}, v{24+2*i}, v{24+2*i+1}')
    unpack(8)
    ln(36)
    p.I('buffer_store_dwordx4 v[36:39], v1, s[12:15], 0 offen')
    unpack(36)
    ln(40)
    p.I(f's_mov_b32 s19, {WS_H}')
    p.I('buffer_store_dwordx4 v[40:43], v1, s[12:15], s19 offen')
    p.L('L_ln_done:')
    p.I('s_endpgm')
    return p.finalize()

def lane_setup(p, lane=1):
    p.I(f'v_and_b32 v{lane}, 63, v0')
    p.I('v_lshrrev_b32 v252, 6, v0')
    p.I('v_readfirstlane_b32 s34, v252')

def tr_lane_bits(p, lane, rowbytes, pi, dst_row, dst_col, t1):
    sh = int(math.log2(rowbytes))
    p.I(f'v_lshrrev_b32 v{dst_row}, 5, v{lane}')
    p.I(f'v_lshlrev_b32 v{dst_row}, 3, v{dst_row}')
    p.I(f'v_bfe_u32 v{t1}, v{lane}, 2, 2')
    p.I(f'v_add_u32 v{dst_row}, v{dst_row}, v{t1}')
    p.I(f'v_lshlrev_b32 v{dst_row}, {sh}, v{dst_row}')
    p.I(f'v_bfe_u32 v{dst_col}, v{lane}, 4, 1')
    p.I(f'v_lshlrev_b32 v{dst_col}, 5, v{dst_col}')
    if pi:
        p.I(f'v_and_b32 v{t1}, 1, v{lane}')
        p.I(f'v_lshl_add_u32 v{dst_col}, v{t1}, 4, v{dst_col}')
        p.I(f'v_bfe_u32 v{t1}, v{lane}, 1, 1')
        p.I(f'v_lshl_add_u32 v{dst_col}, v{t1}, 3, v{dst_col}')
    else:
        p.I(f'v_and_b32 v{t1}, 3, v{lane}')
        p.I(f'v_lshl_add_u32 v{dst_col}, v{t1}, 3, v{dst_col}')

def pi_row(p, lane, dst, t1):
    p.I(f'v_and_b32 v{dst}, 19, v{lane}')
    p.I(f'v_bfe_u32 v{t1}, v{lane}, 2, 1')
    p.I(f'v_lshl_add_u32 v{dst}, v{t1}, 3, v{dst}')
    p.I(f'v_bfe_u32 v{t1}, v{lane}, 3, 1')
    p.I(f'v_lshl_add_u32 v{dst}, v{t1}, 2, v{dst}')

MFMA = 'v_mfma_f32_32x32x16_bf16'

def gemm64(p, tag, nst, a_kind, sA, sB, a_stride, b_stride, s_aoff, s_boff, a_step, b_step, pre_epilogue_loads):
    NS = 5
    L = 1
    ACC = 64
    p.I('s_lshr_b32 s37, s34, 2')
    p.I('s_bfe_u32 s35, s34, 0x10001')
    p.I('s_and_b32 s36, s34, 1')
    def dma128(dst0, stride):
        p.I(f'v_lshrrev_b32 v252, 3, v{L}')
        p.I(f'v_and_b32 v253, 7, v{L}')
        p.I(f'v_bfe_u32 v254, v{L}, 4, 1')
        p.I(f'v_lshlrev_b32 v254, 2, v254')
        p.I(f'v_xor_b32 v253, v253, v254')
        p.I(f's_mov_b32 s38, {stride}')
        p.I(f'v_mul_lo_u32 v252, v252, s38')
        p.I(f'v_lshl_add_u32 v{dst0}, v253, 4, v252')
        p.I(f'v_add_u32 v{dst0+1}, {8*stride - 1024}, v{dst0}')
    dma128(2, b_stride)
    if a_kind == 'tr':
        dma128(4, a_stride)
    else:
        p.I(f'v_lshrrev_b32 v252, 4, v{L}')
        p.I('s_and_b32 s38, s34, 1')
        p.I('s_lshl_b32 s38, s38, 3')
        p.I(f'v_and_b32 v253, 15, v{L}')
        p.I(f's_mov_b32 s39, {a_stride}')
        for i in range(2):
            p.I(f'v_add_u32 v254, {4*i}, v252')
            p.I('v_add_u32 v255, s38, v254')
            p.I('v_xor_b32 v255, v253, v255')
            p.I('v_mul_lo_u32 v254, v254, s39')
            p.I(f'v_lshl_add_u32 v{4+i}, v255, 4, v254')
            if i: p.I(f'v_subrev_u32 v{4+i}, {1024*i}, v{4+i}')
    tr_lane_bits(p, L, 128, False, 252, 253, 254)
    p.I('s_lshl_b32 s38, s36, 6')
    p.I('v_add_u32 v253, s38, v253')
    p.I(f'v_bfe_u32 v254, v{L}, 3, 1')
    p.I('v_lshlrev_b32 v254, 6, v254')
    p.I('v_xor_b32 v253, v253, v254')
    p.I('v_add_u32 v6, v252, v253')
    p.I('s_lshl_b32 s38, s37, 13')
    p.I('v_add_u32 v6, s38, v6')
    if a_kind == 'tr':
        tr_lane_bits(p, L, 128, True, 252, 253, 254)
        p.I('s_lshl_b32 s39, s35, 6')
        p.I('v_add_u32 v253, s39, v253')
        p.I(f'v_bfe_u32 v254, v{L}, 3, 1')
        p.I('v_lshlrev_b32 v254, 6, v254')
        p.I('v_xor_b32 v253, v253, v254')
        p.I('v_add_u32 v7, v252, v253')
        p.I('v_add_u32 v7, s38, v7')
        nA = 1
    else:
        pi_row(p, L, 252, 253)
        p.I('s_lshl_b32 s39, s35, 5')
        p.I('v_add_u32 v252, s39, v252')
        p.I('v_and_b32 v253, 15, v252')
        p.I(f'v_lshrrev_b32 v254, 5, v{L}')
        p.I('v_xor_b32 v253, v253, v254')
        p.I('s_lshl_b32 s39, s37, 3')
        p.I('v_xor_b32 v253, s39, v253')
        p.I('v_lshlrev_b32 v253, 4, v253')
        p.I('v_lshl_add_u32 v252, v252, 8, v253')
        for kq in range(4):
            p.I(f'v_xor_b32 v{7+kq}, {32*kq}, v252')
        nA = 4
    p.I('s_lshl_b32 s39, s34, 11')
    def loads(n):
        sl = (n % NS) * 32768
        p.I(f's_add_u32 m0, s39, {sl}')
        p.I(f's_add_u32 s40, s{s_aoff}, {n*a_step}')
        p.I(f'buffer_load_dwordx4 v4, s[{sA}:{sA+3}], s40 offen lds')
        p.I(f'buffer_load_dwordx4 v5, s[{sA}:{sA+3}], s40 offen offset:1024 lds')
        p.I(f's_add_u32 m0, s39, {sl+16384}')
        p.I(f's_add_u32 s41, s{s_boff}, {n*b_step}')
        p.I(f'buffer_load_dwordx4 v2, s[{sB}:{sB+3}], s41 offen lds')
        p.I(f'buffer_load_dwordx4 v3, s[{sB}:{sB+3}], s41 offen offset:1024 lds')
    pre_epilogue_loads()
    for n in range(NS - 1):
        loads(n)
    BUF = [128, 160]
    def mfmas(n):
        b = BUF[n % 2]
        for kq in range(4):
            c = '0' if (n == 0 and kq == 0) else vr(ACC, 16)
            p.I(f'{MFMA} {vr(ACC,16)}, {vr(b+8*kq,4)}, {vr(b+8*kq+4,4)}, {c}')
    for n in range(nst):
        sl = (n % NS) * 32768
        after = sum(4 for m in range(n + 1, min(n + NS - 1, nst)))
        p.I(f's_waitcnt vmcnt({after}) lgkmcnt(0)')
        p.I('s_barrier')
        b = BUF[n % 2]
        p.I(f'v_add_u32 v240, {sl}, v6')
        for i in range(nA): p.I(f'v_add_u32 v{241+i}, {sl}, v{7+i}')
        for kq in range(4):
            if a_kind == 'tr':
                p.I(f'ds_read_b64_tr_b16 {vr(b+8*kq,2)}, v241 offset:{kq*2048}')
                p.I(f'ds_read_b64_tr_b16 {vr(b+8*kq+2,2)}, v241 offset:{kq*2048+512}')
            else:
                p.I(f'ds_read_b128 {vr(b+8*kq,4)}, v{241+kq}')
            p.I(f'ds_read_b64_tr_b16 {vr(b+8*kq+4,2)}, v240 offset:{16384+kq*2048}')
            p.I(f'ds_read_b64_tr_b16 {vr(b+8*kq+6,2)}, v240 offset:{16384+kq*2048+512}')
        if n + NS - 1 < nst: loads(n + NS - 1)
        if n > 0: mfmas(n - 1)
    mfmas(nst - 1)
    eb = (nst % NS) * 32768
    p.I('s_lshl_b32 s38, s34, 12')
    p.I(f'v_lshlrev_b32 v252, 4, v{L}')
    p.I('v_add_u32 v253, s38, v252')
    p.I(f'v_add_u32 v253, {eb}, v253')
    for q in range(4):
        p.I(f'ds_write_b128 v253, {vr(ACC+4*q,4)} offset:{q*1024}')
    p.I('s_and_b32 s38, s34, 3')
    p.I('s_lshl_b32 s38, s38, 12')
    p.I('s_lshl_b32 s40, s37, 11')
    p.I('s_add_u32 s38, s38, s40')
    p.I('v_add_u32 v253, s38, v252')
    p.I(f'v_add_u32 v253, {eb}, v253')
    p.I('s_waitcnt lgkmcnt(0)')
    p.I('s_barrier')
    p.I(f'ds_read_b128 v[64:67], v253')
    p.I(f'ds_read_b128 v[68:71], v253 offset:1024')
    p.I(f'ds_read_b128 v[72:75], v253 offset:16384')
    p.I(f'ds_read_b128 v[76:79], v253 offset:17408')
    for j in range(8):
        p.I(f'v_add_f32 v{64+j}, v{64+j}, v{72+j}')

def gen_main():
    p = Prog()
    p.I('s_cmp_ge_u32 s2, 512')
    p.I('s_cbranch_scc1 L_main_done')
    p.I('s_cmp_ge_u32 s2, 256')
    p.I('s_cbranch_scc1 L_gemm1')
    p.I('s_load_dwordx4 s[4:7], s[0:1], 8')
    p.I('s_load_dwordx4 s[44:47], s[0:1], 24')
    p.I('s_load_dwordx2 s[48:49], s[0:1], 96')
    L = 1
    lane_setup(p)
    p.I('s_and_b32 s32, s2, 7')
    p.I('s_lshr_b32 s33, s2, 3')
    p.I('s_waitcnt lgkmcnt(0)')
    srd(p, 8, 48, 49, 2 << 20)
    srd(p, 12, 4, 5, 4 << 20)
    srd(p, 16, 6, 7, 4 << 20)
    srd(p, 20, 44, 45, 4 << 20)
    srd(p, 24, 46, 47, 4 << 20)
    srd(p, 28, 48, 49, 16 << 20, WS_PART)
    p.I('s_lshr_b32 s35, s34, 1')
    p.I('s_and_b32 s36, s34, 1')
    c = LOG2E / math.sqrt(128.0)
    p.I(f's_mov_b32 s50, {f32hex(c)}')
    p.I(f's_mov_b32 s51, {f32hex(-c)}')
    SLOT = lambda n: 65536 + (n % 3) * 32768
    ACC = 64; QB = 128; S = [160, 192]; PB = 224; STG = 32
    vDq = 2; vDk = 6; vDv = 8; vAq = 9; vXq = 13; vK = 14; vV = 22
    vm, vl, va, vnmc, vmx, vt = 26, 27, 28, 29, 30, 31
    CUR = 240
    p.I('s_lshl_b32 s37, s33, 16')
    p.I('s_lshl_b32 s38, s34, 13')
    p.I('s_add_u32 s37, s37, s38')
    p.I('s_lshl_b32 s39, s36, 3')
    for i in range(8):
        p.I(f's_add_u32 s40, s39, {i}')
        p.I(f'v_xor_b32 v{128+i}, s40, v{L}')
        p.I(f'v_lshlrev_b32 v{128+i}, 4, v{128+i}')
    for half in range(2):
        p.I(f's_add_u32 m0, s38, {half*4096}')
        p.I(f's_add_u32 s40, s37, {half*4096}')
        for i in range(4):
            p.I(f'buffer_load_dwordx4 v{128+4*half+i}, s[8:11], s40 offen offset:{1024*i} lds')
    for i in range(4):
        p.I(f'v_xor_b32 v{vDq+i}, {4*i}, v{L}')
        p.I(f'v_lshlrev_b32 v{vDq+i}, 4, v{vDq+i}')
        if i: p.I(f'v_add_u32 v{vDq+i}, {7168*i}, v{vDq+i}')
    p.I(f'v_lshrrev_b32 v252, 4, v{L}')
    p.I(f'v_and_b32 v253, 15, v{L}')
    for i in range(2):
        p.I(f's_add_u32 s40, s39, {4*i}')
        p.I('v_add_u32 v254, s40, v252')
        p.I('v_xor_b32 v254, v253, v254')
        p.I('v_lshlrev_b32 v254, 4, v254')
        p.I(f'v_lshl_add_u32 v{vDk+i}, v252, 8, v254')
    p.I('v_lshlrev_b32 v254, 2, v252')
    p.I('v_xor_b32 v254, v253, v254')
    p.I('v_lshlrev_b32 v254, 4, v254')
    p.I(f'v_lshl_add_u32 v{vDv}, v252, 8, v254')
    p.I('s_lshl_b32 s41, s34, 12')
    p.I('s_lshl_b32 s42, s34, 11')
    p.I('s_lshl_b32 s52, s34, 15')
    p.I('s_lshl_b32 s40, s32, 10')
    p.I('s_add_u32 s52, s52, s40')
    p.I('s_lshl_b32 s53, s32, 19')
    p.I('s_add_u32 s53, s53, s42')
    p.I(f's_add_u32 s53, s53, {1536*256}')
    p.I('s_lshl_b32 s54, s32, 19')
    p.I('s_add_u32 s54, s54, s41')
    stages = [('Q', n) for n in range(16)] + [('T', n) for n in range(9)] + [('W', n) for n in range(16)]
    def nloads(k):
        if k >= len(stages): return 0
        kind, n = stages[k]
        return 2 if (kind == 'T' and n in (0, 8)) else 4
    def loads(k):
        if k >= len(stages): return
        kind, n = stages[k]
        sl = SLOT(k)
        if kind == 'Q':
            p.I(f's_add_u32 m0, s41, {sl}')
            p.I(f's_add_u32 s40, s52, {n*262144}')
            for i in range(4):
                p.I(f'buffer_load_dwordx4 v{vDq+i}, s[20:23], s40 offen offset:{1024*i} lds')
        elif kind == 'W':
            p.I(f's_add_u32 m0, s41, {sl}')
            p.I(f's_add_u32 s40, s54, {n*32768}')
            for i in range(4):
                p.I(f'buffer_load_dwordx4 v{vDq+i}, s[24:27], s40 offen offset:{1024*i} lds')
        else:
            if n < 8:
                p.I(f's_add_u32 m0, s42, {sl}')
                p.I(f's_add_u32 s40, s53, {n*16384}')
                for i in range(2):
                    p.I(f'buffer_load_dwordx4 v{vDk+i}, s[12:15], s40 offen offset:{1024*i} lds')
            if n > 0:
                p.I(f's_add_u32 m0, s42, {sl+16384}')
                p.I(f's_add_u32 s43, s53, {(n-1)*16384}')
                for i in range(2):
                    p.I(f'buffer_load_dwordx4 v{vDv}, s[16:19], s43 offen offset:{1024*i} lds')
    loads(0); loads(1)
    tr_lane_bits(p, L, 1024, True, 252, 253, 254)
    p.I(f'v_bfe_u32 v254, v{L}, 2, 2')
    p.I('v_lshlrev_b32 v254, 6, v254')
    p.I('s_lshl_b32 s40, s35, 8')
    p.I('v_add_u32 v255, s40, v253')
    p.I('v_add_u32 v255, v255, v252')
    p.I('v_add_u32 v255, v255, v254')
    for t in range(4):
        p.I(f'v_xor_b32 v{vAq+t}, {64*t}, v255')
    p.I(f'v_and_b32 v252, 31, v{L}')
    p.I(f'v_lshrrev_b32 v253, 5, v{L}')
    p.I('v_and_b32 v254, 15, v252')
    p.I('v_xor_b32 v254, v254, v253')
    p.I('v_lshlrev_b32 v254, 4, v254')
    p.I('v_lshl_add_u32 v254, v252, 10, v254')
    p.I('s_lshl_b32 s40, s36, 15')
    p.I(f'v_add_u32 v{vXq}, s40, v254')
    pi_row(p, L, 252, 254)
    p.I('v_and_b32 v254, 15, v252')
    p.I('v_xor_b32 v254, v254, v253')
    p.I('v_lshlrev_b32 v254, 4, v254')
    p.I('v_lshl_add_u32 v254, v252, 8, v254')
    for k in range(8):
        p.I(f'v_xor_b32 v{vK+k}, {32*k}, v254')
    tr_lane_bits(p, L, 256, True, 252, 253, 254)
    p.I(f'v_bfe_u32 v254, v{L}, 2, 2')
    p.I('v_lshlrev_b32 v254, 6, v254')
    p.I('v_add_u32 v255, v252, v253')
    p.I('v_add_u32 v255, v255, v254')
    for t in range(4):
        p.I(f'v_xor_b32 v{vV+t}, {64*t}, v255')

    QBUF = [128, 168]
    WBUF = [128, 160]
    def top(k):
        p.I(f's_waitcnt vmcnt({nloads(k+1)}) lgkmcnt(0)')
        p.I('s_barrier')
    def q_reads(k, n):
        b = QBUF[n % 2]; sl = SLOT(k)
        for t in range(4): p.I(f'v_add_u32 v{CUR+t}, {sl}, v{vAq+t}')
        for kk in range(2): p.I(f'v_xor_b32 v{CUR+4+kk}, {(4*n+2*kk)*16}, v{vXq}')
        for kk in range(2):
            p.I(f'ds_read_b128 {vr(b+4*kk,4)}, v{CUR+4+kk}')
            for t in range(4):
                a = b + 8 + 16*kk + 4*t
                p.I(f'ds_read_b64_tr_b16 {vr(a,2)}, v{CUR+t} offset:{kk*16384}')
                p.I(f'ds_read_b64_tr_b16 {vr(a+2,2)}, v{CUR+t} offset:{kk*16384+4096}')
    def q_mfmas(n):
        b = QBUF[n % 2]
        for kk in range(2):
            for t in range(4):
                cc = '0' if (n == 0 and kk == 0) else vr(ACC+16*t, 16)
                p.I(f'{MFMA} {vr(ACC+16*t,16)}, {vr(b+8+16*kk+4*t,4)}, {vr(b+4*kk,4)}, {cc}')
    vAw = 9; vXw = 11
    def w_setup():
        for i in range(4):
            p.I(f'v_xor_b32 v{vDq+i}, {4*i}, v{L}')
            p.I(f'v_lshlrev_b32 v{vDq+i}, 4, v{vDq+i}')
    def w_setup2():
        tr_lane_bits(p, L, 1024, True, 252, 253, 254)
        p.I(f'v_bfe_u32 v254, v{L}, 2, 2')
        p.I('v_lshlrev_b32 v254, 6, v254')
        p.I('s_lshl_b32 s40, s34, 7')
        p.I('v_add_u32 v253, s40, v253')
        for ta in range(2):
            p.I(f'v_add_u32 v255, {64*ta}, v253')
            p.I('v_xor_b32 v255, v255, v254')
            p.I(f'v_add_u32 v{vAw+ta}, v255, v252')
        p.I('s_lshl_b32 s40, s36, 15')
        p.I(f'v_subrev_u32 v{vXw}, s40, v{vXq}')
    def w_reads(k, n):
        b = WBUF[n % 2]; sl = SLOT(k)
        for ta in range(2): p.I(f'v_add_u32 v{CUR+ta}, {sl}, v{vAw+ta}')
        for kk in range(2): p.I(f'v_xor_b32 v{CUR+4+kk}, {(4*n+2*kk)*16}, v{vXw}')
        for kk in range(2):
            for tb in range(2):
                p.I(f'ds_read_b128 {vr(b+16*kk+4*tb,4)}, v{CUR+4+kk} offset:{tb*32768}')
            for ta in range(2):
                a = b + 16*kk + 8 + 4*ta
                p.I(f'ds_read_b64_tr_b16 {vr(a,2)}, v{CUR+ta} offset:{kk*16384}')
                p.I(f'ds_read_b64_tr_b16 {vr(a+2,2)}, v{CUR+ta} offset:{kk*16384+4096}')
    def w_mfmas(n):
        b = WBUF[n % 2]
        for kk in range(2):
            for ta in range(2):
                for tb in range(2):
                    d = ACC + 16*(2*ta+tb)
                    cc = '0' if (n == 0 and kk == 0) else vr(d, 16)
                    p.I(f'{MFMA} {vr(d,16)}, {vr(b+16*kk+8+4*ta,4)}, {vr(b+16*kk+4*tb,4)}, {cc}')

    def t_stage(k, n):
        sl = SLOT(k)
        M = []
        V = []
        if n < 8:
            for kq in range(8): p.I(f'v_add_u32 v{CUR+kq}, {sl}, v{vK+kq}')
        if n > 0:
            for t in range(4): p.I(f'v_add_u32 v{CUR+8+t}, {sl}, v{vV+t}')
        req_pv = [0]*4
        if n > 0:
            i = n - 1
            Sc = S[i % 2]
            V.append(f'v_max3_f32 v{vmx}, v{Sc}, v{Sc+1}, v{Sc+2}')
            for r in range(3, 31, 2): V.append(f'v_max3_f32 v{vmx}, v{vmx}, v{Sc+r}, v{Sc+r+1}')
            V.append(f'v_max_f32 v{vmx}, v{vmx}, v{Sc+31}')
            V.append(f'v_mov_b32 v{vt}, v{vmx}')
            V.append(f'v_permlane32_swap_b32 v{vmx}, v{vt}')
            if i == 0:
                V.append(f'v_max_f32 v{vm}, v{vmx}, v{vt}')
                V.append(f'v_mul_f32 v{vnmc}, s51, v{vm}')
                V.append(f'v_mov_b32 v{vl}, 0')
            else:
                V.append(f'v_max3_f32 v{vmx}, v{vmx}, v{vt}, v{vm}')
                V.append(f'v_sub_f32 v{va}, v{vm}, v{vmx}')
                V.append(f'v_mul_f32 v{va}, s50, v{va}')
                V.append(f'v_exp_f32 v{va}, v{va}')
                V.append(f'v_mul_f32 v{vnmc}, s51, v{vmx}')
                V.append(f'v_mov_b32 v{vm}, v{vmx}')
                V.append(f'v_mul_f32 v{vl}, v{vl}, v{va}')
                for r in range(64): V.append(f'v_mul_f32 v{ACC+r}, v{ACC+r}, v{va}')
            for jj in range(4):
                r0 = Sc + 8*jj
                for r in range(8): V.append(f'v_fma_f32 v{r0+r}, v{r0+r}, s50, v{vnmc}')
                for r in range(8): V.append(f'v_exp_f32 v{r0+r}, v{r0+r}')
                for r in range(8): V.append(f'v_add_f32 v{vl}, v{vl}, v{r0+r}')
                for r in range(4): V.append(f'v_cvt_pk_bf16_f32 v{PB+4*jj+r}, v{r0+2*r}, v{r0+2*r+1}')
                req_pv[jj] = len(V)
        f = 0
        if n < 8:
            Sn = S[n % 2]
            for a in range(2):
                for kq in range(8):
                    st = STG + 4*(f % 8)
                    cc = '0' if kq == 0 else vr(Sn+16*a, 16)
                    M.append(([f'ds_read_b128 {vr(st,4)}, v{CUR+kq} offset:{a*8192}'],
                              f'{MFMA} {vr(Sn+16*a,16)}, {vr(st,4)}, {vr(QB+4*kq,4)}, {cc}', 0))
                    f += 1
        if n > 0:
            for jj in range(4):
                for t in range(4):
                    st = STG + 4*(f % 8)
                    cc = '0' if (n == 1 and jj == 0) else vr(ACC+16*t, 16)
                    M.append(([f'ds_read_b64_tr_b16 {vr(st,2)}, v{CUR+8+t} offset:{16384+jj*4096}',
                               f'ds_read_b64_tr_b16 {vr(st+2,2)}, v{CUR+8+t} offset:{16384+jj*4096+1024}'],
                              f'{MFMA} {vr(ACC+16*t,16)}, {vr(st,4)}, {vr(PB+4*jj,4)}, {cc}', req_pv[jj]))
                    f += 1
        D = 6
        for j in range(min(D, len(M))):
            for r in M[j][0]: p.I(r)
        vpos = 0
        nm = len(M)
        for j in range(nm):
            while vpos < M[j][2]:
                p.I(V[vpos]); vpos += 1
            p.I(M[j][1])
            if j + D < nm:
                for r in M[j+D][0]: p.I(r)
            target = -(-(j+1) * len(V) // nm)
            while vpos < target:
                p.I(V[vpos]); vpos += 1
        assert vpos == len(V)

    for k, (kind, n) in enumerate(stages):
        p.C(f'==== stage {k}: {kind}{n}')
        top(k)
        if kind == 'Q':
            q_reads(k, n)
            loads(k + 2)
            if n == 14: w_setup()
            if n > 0: q_mfmas(n - 1)
        elif kind == 'T':
            loads(k + 2)
            if n == 0:
                q_mfmas(15)
                w_setup2()
                for t in range(4):
                    for tp in range(2):
                        for d in range(4):
                            r = ACC + 16*t + 8*tp + 2*d
                            p.I(f'v_cvt_pk_bf16_f32 v{QB+4*(2*t+tp)+d}, v{r}, v{r+1}')
            t_stage(k, n)
            if n == 8:
                p.I(f'v_mov_b32 v{vt}, v{vl}')
                p.I(f'v_permlane32_swap_b32 v{vl}, v{vt}')
                p.I(f'v_add_f32 v{vl}, v{vl}, v{vt}')
                p.I(f'v_rcp_f32 v{vl}, v{vl}')
                p.I('s_lshl_b32 s40, s35, 8')
                p.I(f'v_add_u32 v252, s40, v{vXq}')
                for t in range(4):
                    for tp in range(2):
                        r = ACC + 16*t + 8*tp
                        o = 128 + 4*(2*t+tp)
                        for j in range(8): p.I(f'v_mul_f32 v{r+j}, v{r+j}, v{vl}')
                        for d in range(4): p.I(f'v_cvt_pk_bf16_f32 v{o+d}, v{r+2*d}, v{r+2*d+1}')
                        p.I(f'v_xor_b32 v{CUR+2*t+tp}, {(4*t+2*tp)*16}, v252')
                        p.I(f'ds_write_b128 v{CUR+2*t+tp}, {vr(o,4)}')
        else:
            w_reads(k, n)
            loads(k + 2)
            if n > 0: w_mfmas(n - 1)
    w_mfmas(15)
    p.I('s_lshl_b32 s40, s32, 21')
    p.I('s_lshl_b32 s43, s33, 16')
    p.I('s_add_u32 s40, s40, s43')
    p.I('s_add_u32 s40, s40, s41')
    p.I('s_add_u32 s43, s40, 32768')
    p.I(f'v_lshlrev_b32 v252, 4, v{L}')
    for ta in range(2):
        for tb in range(2):
            for tp in range(2):
                r = ACC + 16*(2*ta+tb) + 8*tp
                o = 128 + 4*(4*ta+2*tb+tp)
                for d in range(4): p.I(f'v_cvt_pk_bf16_f32 v{o+d}, v{r+2*d}, v{r+2*d+1}')
                p.I(f'buffer_store_dwordx4 {vr(o,4)}, v252, s[28:31], s{43 if tb else 40} offen offset:{(4*ta+2*tp)*512}')
    p.I('s_endpgm')

    p.L('L_gemm1:')
    p.I('s_sub_u32 s3, s2, 256')
    p.I('s_and_b32 s33, s3, 31')
    p.I('s_lshr_b32 s32, s3, 5')
    p.I('s_cmp_ge_u32 s33, 28')
    p.I('s_cbranch_scc1 L_main_done')
    p.I('s_load_dwordx4 s[4:7], s[0:1], 48')
    p.I('s_load_dwordx2 s[48:49], s[0:1], 96')
    lane_setup(p)
    p.I('s_waitcnt lgkmcnt(0)')
    srd(p, 8, 4, 5, 2048*1792*2)
    srd(p, 12, 48, 49, 2 << 20, WS_H)
    srd(p, 16, 6, 7, 1792*2)
    srd(p, 20, 48, 49, U_BYTES, WS_U)
    p.I(f's_mul_i32 s44, s34, {16*3584}')
    p.I('s_lshl_b32 s40, s33, 7')
    p.I('s_add_u32 s44, s44, s40')
    p.I('s_lshl_b32 s45, s34, 14')
    p.I('s_lshl_b32 s40, s32, 7')
    p.I('s_add_u32 s45, s45, s40')
    def g1_pre():
        p.I('s_lshl_b32 s40, s33, 7')
        p.I('s_lshl_b32 s41, s35, 6')
        p.I('s_add_u32 s40, s40, s41')
        p.I('s_lshl_b32 s41, s37, 5')
        p.I('s_add_u32 s46, s40, s41')
        p.I('v_lshrrev_b32 v252, 5, v1')
        p.I('v_lshlrev_b32 v20, 4, v252')
        p.I('buffer_load_dwordx4 v[16:19], v20, s[16:19], s46 offen')
    gemm64(p, 'g1', 16, 'tr', 8, 12, 3584, 1024, 44, 45, 128*3584, 128*1024, g1_pre)
    p.I('s_mov_b32 s40, 0xffff0000')
    k0 = math.sqrt(2.0/math.pi)
    p.I(f's_mov_b32 s41, {f32hex(-2.0*k0*LOG2E)}')
    p.I(f's_mov_b32 s42, {f32hex(-2.0*k0*LOG2E*0.044715)}')
    for i in range(4):
        p.I(f'v_lshlrev_b32 v{72+2*i}, 16, v{16+i}')
        p.I(f'v_and_b32 v{72+2*i+1}, s40, v{16+i}')
    for j in range(8): p.I(f'v_add_f32 v{64+j}, v{64+j}, v{72+j}')
    for j in range(8): p.I(f'v_mul_f32 v{72+j}, v{64+j}, v{64+j}')
    p.I('v_mov_b32 v21, s41')
    for j in range(8): p.I(f'v_fma_f32 v{72+j}, v{72+j}, s42, v21')
    for j in range(8): p.I(f'v_mul_f32 v{72+j}, v{72+j}, v{64+j}')
    for j in range(8): p.I(f'v_exp_f32 v{72+j}, v{72+j}')
    for j in range(8): p.I(f'v_add_f32 v{72+j}, 1.0, v{72+j}')
    for j in range(8): p.I(f'v_rcp_f32 v{72+j}, v{72+j}')
    for j in range(8): p.I(f'v_mul_f32 v{64+j}, v{64+j}, v{72+j}')
    for d in range(4): p.I(f'v_cvt_pk_bf16_f32 v{80+d}, v{64+2*d}, v{64+2*d+1}')
    p.I('v_and_b32 v252, 31, v1')
    p.I('s_lshl_b32 s40, s32, 6')
    p.I('s_lshl_b32 s41, s36, 5')
    p.I('s_add_u32 s40, s40, s41')
    p.I('v_add_u32 v252, s40, v252')
    p.I('s_mov_b32 s41, 3584')
    p.I('v_mul_lo_u32 v252, v252, s41')
    p.I('v_add_u32 v252, v252, v20')
    p.I('buffer_store_dwordx4 v[80:83], v252, s[20:23], s46 offen')
    p.L('L_main_done:')
    p.I('s_endpgm')
    return p.finalize()

def gen_final():
    p = Prog()
    p.I('s_cmp_ge_u32 s2, 256')
    p.I('s_cbranch_scc1 L_fin_done')
    p.I('s_and_b32 s33, s2, 31')
    p.I('s_lshr_b32 s32, s2, 5')
    p.I('s_load_dwordx2 s[4:5], s[0:1], 0')
    p.I('s_load_dwordx4 s[44:47], s[0:1], 64')
    p.I('s_load_dwordx2 s[6:7], s[0:1], 80')
    p.I('s_load_dwordx2 s[48:49], s[0:1], 96')
    lane_setup(p)
    p.I('s_waitcnt lgkmcnt(0)')
    srd(p, 8, 48, 49, U_BYTES, WS_U)
    srd(p, 12, 44, 45, 1792*2048*2)
    srd(p, 16, 46, 47, 2048*2)
    srd(p, 20, 4, 5, 2 << 20)
    srd(p, 24, 6, 7, 2 << 20)
    srd(p, 28, 48, 49, 16 << 20, WS_PART)
    p.I('s_lshl_b32 s40, s32, 6')
    p.I('s_lshl_b32 s41, s34, 3')
    p.I('s_add_u32 s40, s40, s41')
    p.I('s_mul_i32 s52, s40, 3584')
    p.I('s_lshl_b32 s53, s34, 16')
    p.I('s_lshl_b32 s40, s33, 7')
    p.I('s_add_u32 s53, s53, s40')
    def fin_pre():
        p.I('v_and_b32 v252, 31, v1')
        p.I('s_lshl_b32 s40, s33, 6')
        p.I('s_lshl_b32 s41, s36, 5')
        p.I('s_add_u32 s40, s40, s41')
        p.I('v_add_u32 v253, s40, v252')
        p.I('v_lshlrev_b32 v254, 1, v253')
        p.I('buffer_load_ushort v20, v254, s[16:19], 0 offen')
        p.I('s_lshl_b32 s41, s32, 7')
        p.I('s_lshl_b32 s42, s35, 6')
        p.I('s_add_u32 s41, s41, s42')
        p.I('s_lshl_b32 s42, s37, 5')
        p.I('s_add_u32 s54, s41, s42')
        p.I('v_lshrrev_b32 v254, 5, v1')
        p.I('v_lshlrev_b32 v254, 4, v254')
        p.I('v_lshl_add_u32 v21, v253, 10, v254')
        p.I('buffer_load_dwordx4 v[16:19], v21, s[20:23], s54 offen')
        p.I('s_lshl_b32 s40, s40, 10')
        p.I('s_lshl_b32 s41, s54, 5')
        p.I('s_add_u32 s40, s40, s41')
        p.I('v_lshlrev_b32 v254, 4, v1')
        for g in range(8):
            p.I(f's_add_u32 s41, s40, {g << 21}')
            p.I(f'buffer_load_dwordx4 {vr(96+4*g,4)}, v254, s[28:31], s41 offen')
    gemm64(p, 'g2', 14, 'row', 8, 12, 3584, 4096, 52, 53, 256, 128*4096, fin_pre)
    p.I('s_mov_b32 s40, 0xffff0000')
    p.I(f's_mov_b32 s41, {f32hex(-LOG2E)}')
    p.I('v_lshlrev_b32 v20, 16, v20')
    for j in range(8): p.I(f'v_add_f32 v{64+j}, v{64+j}, v20')
    for j in range(8): p.I(f'v_mul_f32 v{72+j}, s41, v{64+j}')
    for j in range(8): p.I(f'v_exp_f32 v{72+j}, v{72+j}')
    for j in range(8): p.I(f'v_add_f32 v{72+j}, 1.0, v{72+j}')
    for j in range(8): p.I(f'v_rcp_f32 v{72+j}, v{72+j}')
    for j in range(8): p.I(f'v_mul_f32 v{64+j}, v{64+j}, v{72+j}')
    for g in range(8):
        for i in range(4):
            if g == 0:
                p.I(f'v_lshlrev_b32 v{72+2*i}, 16, v{96+i}')
                p.I(f'v_and_b32 v{72+2*i+1}, s40, v{96+i}')
            else:
                p.I(f'v_lshlrev_b32 v{80+2*i}, 16, v{96+4*g+i}')
                p.I(f'v_and_b32 v{80+2*i+1}, s40, v{96+4*g+i}')
        if g:
            for j in range(8): p.I(f'v_add_f32 v{72+j}, v{72+j}, v{80+j}')
    for i in range(4):
        p.I(f'v_lshlrev_b32 v{80+2*i}, 16, v{16+i}')
        p.I(f'v_and_b32 v{80+2*i+1}, s40, v{16+i}')
    for j in range(8): p.I(f'v_fma_f32 v{80+j}, v{72+j}, v{64+j}, v{80+j}')
    for d in range(4): p.I(f'v_cvt_pk_bf16_f32 v{88+d}, v{80+2*d}, v{80+2*d+1}')
    p.I('buffer_store_dwordx4 v[88:91], v21, s[24:27], s54 offen')
    p.L('L_fin_done:')
    p.I('s_endpgm')
    return p.finalize()

def kd(name, vgpr, sgpr=102):
    return f""".p2align 6
.amdhsa_kernel {name}
  .amdhsa_next_free_vgpr {vgpr}
  .amdhsa_next_free_sgpr {sgpr}
  .amdhsa_accum_offset {vgpr}
  .amdhsa_group_segment_fixed_size 0
  .amdhsa_kernarg_size 104
  .amdhsa_user_sgpr_count 2
  .amdhsa_user_sgpr_kernarg_segment_ptr 1
  .amdhsa_system_sgpr_workgroup_id_x 1
.end_amdhsa_kernel
"""

def main(path):
    hdr = open('recurrent_scan__sliding_block_cached__mixer_token_mlp__prompt.s.ref').read().split('; Override launch')[0]
    out = [hdr.rstrip('\n')]
    out.append('; @launch kernel=ln_kernel grid=(512,1,1) block=(256,1,1) lds=0')
    out.append('; @launch kernel=main_kernel grid=(512,1,1) block=(512,1,1) lds=163840')
    out.append('; @launch kernel=final_kernel grid=(256,1,1) block=(512,1,1) lds=163840')
    out.append('.amdgcn_target "amdgcn-amd-amdhsa--gfx950"\n.text')
    for name, body in (('ln_kernel', gen_ln()), ('main_kernel', gen_main()), ('final_kernel', gen_final())):
        out.append(f'.globl {name}\n.p2align 8\n.type {name},@function\n{name}:')
        out.append(body)
    out.append('.section .rodata,"a"')
    out.append(kd('ln_kernel', 48, 32))
    out.append(kd('main_kernel', 256, 64))
    out.append(kd('final_kernel', 256, 64))
    open(path, 'w').write('\n'.join(out))

if __name__ == '__main__':
    main(sys.argv[1] if len(sys.argv) > 1 else 'recurrent_scan__sliding_block_cached__mixer_token_mlp__prompt.s')
```

```python
import re

def _regs(tok):
    tok = tok.strip()
    tok = tok.lstrip('-')
    m = re.fullmatch(r'abs\((.*)\)', tok)
    if m: tok = m.group(1)
    m = re.fullmatch(r'([vsa])(\d+)', tok)
    if m: return [(m.group(1), int(m.group(2)))]
    m = re.fullmatch(r'([vsa])\[(\d+):(\d+)\]', tok)
    if m: return [(m.group(1), i) for i in range(int(m.group(2)), int(m.group(3)) + 1)]
    if tok == 'vcc': return [('s', 106), ('s', 107)]
    if tok == 'm0': return [('s', 124)]
    if tok == 'exec': return [('s', 126), ('s', 127)]
    return []

TRANS = ('v_exp_f32', 'v_log_f32', 'v_rcp_f32', 'v_rsq_f32', 'v_sqrt_f32', 'v_sin_f32', 'v_cos_f32')

class Inst:
    __slots__ = ('text', 'mn', 'reads', 'writes', 'kind', 'srcc', 'ab', 'dpp', 'lds_dma', 'nstates')
    def __init__(self, text):
        self.text = text
        body = text.split(';')[0].strip()
        parts = body.split(None, 1)
        self.mn = mn = parts[0]
        rest = parts[1] if len(parts) > 1 else ''
        mm = re.search(r'\s(offen|offset\d?:|lds\b|quad_perm|row_|sc0|sc1|nt\b|op_sel|wave_|bank_mask|bound_ctrl|idxen|neg_lo|neg_hi)', rest)
        mods = ''
        if mm:
            mods = rest[mm.start():]; rest = rest[:mm.start()]
        ops = [o.strip() for o in rest.split(',')] if rest.strip() else []
        self.reads = set(); self.writes = set(); self.srcc = set(); self.ab = set()
        self.dpp = ('quad_perm' in mods or 'row_' in mods or 'wave_' in mods)
        self.lds_dma = False
        self.nstates = 1
        R = lambda t: set(_regs(t))
        if mn.startswith('v_mfma'):
            self.kind = 'mfma'
            self.writes = R(ops[0]); self.ab = R(ops[1]) | R(ops[2]); self.srcc = R(ops[3])
            self.reads = self.ab | self.srcc
        elif mn.startswith('v_cmp'):
            self.kind = 'valu'
            self.writes = R(ops[0])
            for o in ops[1:]: self.reads |= R(o)
        elif mn.startswith('v_permlane'):
            self.kind = 'valu'
            self.writes = R(ops[0]) | R(ops[1]); self.reads = set(self.writes)
        elif mn.startswith('v_'):
            self.kind = 'valu'
            self.writes = R(ops[0])
            for o in ops[1:]: self.reads |= R(o)
            if mn.startswith('v_fmac') or mn.startswith('v_pk_fmac'): self.reads |= self.writes
            if mn.startswith('v_cndmask') and len(ops) == 3: self.reads |= R('vcc')
        elif mn.startswith('ds_read') or mn.startswith('ds_bpermute') or mn.startswith('ds_swizzle'):
            self.kind = 'dsr'
            self.writes = R(ops[0])
            for o in ops[1:]: self.reads |= R(o)
        elif mn.startswith('ds_write'):
            self.kind = 'dsw'
            for o in ops: self.reads |= R(o)
        elif mn.startswith('buffer_load') or mn.startswith('global_load'):
            if re.search(r'\blds\b', mods):
                self.kind = 'dma'; self.lds_dma = True
                for o in ops: self.reads |= R(o)
                self.reads |= R('m0')
            else:
                self.kind = 'vld'
                self.writes = R(ops[0])
                for o in ops[1:]: self.reads |= R(o)
        elif mn.startswith('buffer_atomic'):
            self.kind = 'vld' if 'sc0' in mods else 'vst'
            for o in ops: self.reads |= R(o)
            if 'sc0' in mods: self.writes = R(ops[0])
        elif mn.startswith('buffer_store') or mn.startswith('global_store'):
            self.kind = 'vst'
            for o in ops: self.reads |= R(o)
        elif mn == 's_nop':
            self.kind = 'nop'; self.nstates = int(ops[0], 0) + 1
        elif mn == 's_waitcnt':
            self.kind = 'wait'
        elif mn.startswith('s_load') or mn.startswith('s_memtime') or mn.startswith('s_memrealtime'):
            self.kind = 'smem'
            self.writes = R(ops[0])
            for o in ops[1:]: self.reads |= R(o)
        elif mn.startswith('s_'):
            self.kind = 'salu'
            if mn.startswith('s_cmp') or mn.startswith('s_cbranch') or mn in ('s_barrier', 's_branch', 's_endpgm', 's_setprio', 's_sleep'):
                for o in ops: self.reads |= R(o)
            else:
                self.writes = R(ops[0])
                for o in ops[1:]: self.reads |= R(o)
        else:
            raise ValueError("unknown instruction: " + text)

class Prog:
    def __init__(self):
        self.items = []
    def I(self, text):
        self.items.append(Inst(text))
    def L(self, text):
        self.items.append(text)
    def C(self, text):
        self.items.append('    ; ' + text)

    def finalize(self):
        out = []
        lgkm = []
        vm = []
        hist = []
        def emit(inst):
            out.append('    ' + inst.text)
            hist.append(inst)
            if len(hist) > 40: hist.pop(0)
        def dist_ok(inst):
            need = 0
            d = 0
            for p in reversed(hist):
                req = 0
                vw = {r for r in p.writes if r[0] in 'va'}
                sw = {r for r in p.writes if r[0] == 's'}
                touch = inst.reads | inst.writes
                if p.kind == 'mfma':
                    if inst.kind == 'mfma':
                        if p.writes & inst.ab: req = max(req, 12)
                        if p.writes & inst.srcc and p.writes != inst.srcc: req = max(req, 10)
                        if p.writes & inst.writes and p.writes != inst.srcc: req = max(req, 12)
                    elif inst.kind in ('valu', 'dsr', 'dsw', 'vld', 'vst', 'dma'):
                        if p.writes & touch: req = max(req, 12)
                        if inst.kind in ('valu', 'dsr', 'vld') and (p.srcc & inst.writes): req = max(req, 7)
                elif p.kind == 'valu':
                    if inst.kind == 'mfma' and (vw & inst.reads): req = max(req, 2)
                    if inst.kind == 'valu':
                        if (inst.dpp or inst.mn.startswith('v_permlane')) and (vw & inst.reads): req = max(req, 2)
                        if inst.mn.startswith('v_readfirstlane') or inst.mn.startswith('v_readlane'):
                            if vw & inst.reads: req = max(req, 1)
                        if p.mn in TRANS and (vw & inst.reads): req = max(req, 1)
                        if sw & inst.reads: req = max(req, 2)
                    if inst.kind in ('vld', 'vst', 'dma') and (sw & inst.reads): req = max(req, 5)
                    if inst.kind == 'salu' and (sw & inst.reads): req = max(req, 1)
                elif p.kind == 'salu':
                    if ('s', 124) in p.writes and inst.kind == 'dma': req = max(req, 1)
                elif p.kind == 'vst':
                    if inst.kind in ('valu', 'dsr', 'vld', 'mfma') and ({r for r in p.reads if r[0] == 'v'} & inst.writes): req = max(req, 2)
                if req > d: need = max(need, req - d)
                d += p.nstates
                if d >= 20: break
            return need
        for it in self.items:
            if isinstance(it, str):
                out.append(it)
                if it.strip().endswith(':') and not it.strip().startswith('L_back'):
                    lgkm.clear()
                continue
            inst = it
            if inst.kind == 'wait':
                m = re.search(r'lgkmcnt\((\d+)\)', inst.text)
                if m:
                    n = int(m.group(1));
                    while len(lgkm) > n: lgkm.pop(0)
                m = re.search(r'vmcnt\((\d+)\)', inst.text)
                if m:
                    n = int(m.group(1))
                    while len(vm) > n: vm.pop(0)
                emit(inst); continue
            touch = inst.reads | inst.writes
            if 'd16' in inst.mn: touch = set(inst.reads)
            k = -1
            for i, d in enumerate(lgkm):
                if d & touch: k = i
            wl = None
            if k >= 0:
                wl = min(len(lgkm) - 1 - k, 15)
                while len(lgkm) > wl: lgkm.pop(0)
            k = -1
            for i, d in enumerate(vm):
                if d & touch: k = i
            wv = None
            if k >= 0:
                wv = min(len(vm) - 1 - k, 63)
                while len(vm) > wv: vm.pop(0)
            if wl is not None or wv is not None:
                t = 's_waitcnt'
                if wv is not None: t += f' vmcnt({wv})'
                if wl is not None: t += f' lgkmcnt({wl})'
                emit(Inst(t))
            n = dist_ok(inst)
            while n > 0:
                c = min(n, 16)
                emit(Inst(f's_nop {c-1}'))
                n -= c
            emit(inst)
            if inst.kind == 'dsr': lgkm.append(set(inst.writes))
            elif inst.kind == 'dsw': lgkm.append(set())
            elif inst.kind == 'vld': vm.append(set(inst.writes))
            elif inst.kind in ('vst', 'dma'): vm.append(set())
            if inst.mn == 's_barrier':
                pass
        return '\n'.join(out) + '\n'
```

```python
import sys, math, os, struct
sys.path.insert(0, 'gen')
from asmgen import Prog

WS_XN = 0
WS_H = 2 << 20
WS_U = 4 << 20
WS_PART = 8 << 20
WS_S = 6 << 20
WS_KF = 24 << 20
WS_VF = 25 << 20
U_BYTES = 512 * 1792 * 2

LOG2E = 1.4426950408889634
G1W = int(os.environ.get('G1W', '4'))
PART_SC = os.environ.get('PART_SC', ' sc1')
STAG = os.environ.get('STAG', 'main')
STAMPS = bool(int(os.environ.get('STAMPS', '0')))
def f32hex(x):
    return '0x%08x' % struct.unpack('<I', struct.pack('<f', x))[0]

def vr(a, n=1):
    return f'v{a}' if n == 1 else f'v[{a}:{a+n-1}]'

def srd(p, d, lo, hi, nbytes, add=0):
    if add:
        p.I(f's_add_u32 s{d}, s{lo}, {add}')
        p.I(f's_addc_u32 s{d+1}, s{hi}, 0')
        p.I(f's_and_b32 s{d+1}, s{d+1}, 0xffff')
    else:
        p.I(f's_mov_b32 s{d}, s{lo}')
        p.I(f's_and_b32 s{d+1}, s{hi}, 0xffff')
    p.I(f's_mov_b32 s{d+2}, {nbytes}')
    p.I(f's_mov_b32 s{d+3}, 0x20000')

def allreduce(p, op, v, t):
    p.I(f'{op}_dpp v{v}, v{v}, v{v} quad_perm:[1,0,3,2] row_mask:0xf bank_mask:0xf')
    p.I(f'{op}_dpp v{v}, v{v}, v{v} quad_perm:[2,3,0,1] row_mask:0xf bank_mask:0xf')
    p.I(f'{op}_dpp v{v}, v{v}, v{v} row_half_mirror row_mask:0xf bank_mask:0xf')
    p.I(f'{op}_dpp v{v}, v{v}, v{v} row_mirror row_mask:0xf bank_mask:0xf')
    p.I(f'v_mov_b32 v{t}, v{v}')
    p.I(f'v_permlane16_swap_b32 v{v}, v{t}')
    p.I(f'{op} v{v}, v{v}, v{t}')
    p.I(f'v_mov_b32 v{t}, v{v}')
    p.I(f'v_permlane32_swap_b32 v{v}, v{t}')
    p.I(f'{op} v{v}, v{v}, v{t}')

def lane_setup(p, lane=1):
    p.I(f'v_and_b32 v{lane}, 63, v0')
    p.I('v_lshrrev_b32 v252, 6, v0')
    p.I('v_readfirstlane_b32 s34, v252')

def tr_lane_bits(p, lane, rowbytes, pi, dst_row, dst_col, t1):
    sh = int(math.log2(rowbytes))
    p.I(f'v_lshrrev_b32 v{dst_row}, 5, v{lane}')
    p.I(f'v_lshlrev_b32 v{dst_row}, 3, v{dst_row}')
    p.I(f'v_bfe_u32 v{t1}, v{lane}, 2, 2')
    p.I(f'v_add_u32 v{dst_row}, v{dst_row}, v{t1}')
    p.I(f'v_lshlrev_b32 v{dst_row}, {sh}, v{dst_row}')
    p.I(f'v_bfe_u32 v{dst_col}, v{lane}, 4, 1')
    p.I(f'v_lshlrev_b32 v{dst_col}, 5, v{dst_col}')
    if pi:
        p.I(f'v_and_b32 v{t1}, 1, v{lane}')
        p.I(f'v_lshl_add_u32 v{dst_col}, v{t1}, 4, v{dst_col}')
        p.I(f'v_bfe_u32 v{t1}, v{lane}, 1, 1')
        p.I(f'v_lshl_add_u32 v{dst_col}, v{t1}, 3, v{dst_col}')
    else:
        p.I(f'v_and_b32 v{t1}, 3, v{lane}')
        p.I(f'v_lshl_add_u32 v{dst_col}, v{t1}, 3, v{dst_col}')

def pi_row(p, src, dst, t1):
    p.I(f'v_and_b32 v{dst}, 19, v{src}')
    p.I(f'v_bfe_u32 v{t1}, v{src}, 2, 1')
    p.I(f'v_lshl_add_u32 v{dst}, v{t1}, 3, v{dst}')
    p.I(f'v_bfe_u32 v{t1}, v{src}, 3, 1')
    p.I(f'v_lshl_add_u32 v{dst}, v{t1}, 2, v{dst}')

MFMA = 'v_mfma_f32_32x32x16_bf16'

class Cap:
    def __init__(self): self.l = []
    def I(self, t): self.l.append(t)

def nvm(lst):
    return sum(1 for t in lst if t.startswith('buffer_'))

def merge(p, mf, fill):
    pos = 0
    n = len(mf)
    for j, m in enumerate(mf):
        p.I(m)
        tgt = -(-(j + 1) * len(fill) // n)
        while pos < tgt:
            p.I(fill[pos]); pos += 1

def stamp_tail(p, n, wsl=48):
    p.I('s_waitcnt lgkmcnt(0)')
    p.I(f'v_writelane_b32 v0, s60, {n}')
    p.I('s_memtime s[60:61]')
    p.I('s_waitcnt vmcnt(0) lgkmcnt(0)')
    p.I(f'v_writelane_b32 v0, s60, {n+1}')
    p.I('v_writelane_b32 v0, s62, 60')
    p.I('s_memrealtime s[62:63]')
    p.I('s_waitcnt vmcnt(0) lgkmcnt(0)')
    p.I('v_writelane_b32 v0, s62, 61')
    srd(p, 64, wsl, wsl+1, 1 << 20, 64 << 20)
    p.I('s_lshl_b32 s40, s2, 11')
    p.I('s_lshl_b32 s43, s34, 8')
    p.I('s_add_u32 s40, s40, s43')
    p.I('v_lshlrev_b32 v252, 2, v1')
    p.I('buffer_store_dword v0, v252, s[64:67], s40 offen')

def gen_prep():
    p = Prog()
    p.I('s_cmp_ge_u32 s2, 832')
    p.I('s_cbranch_scc1 L_ln_done')
    p.I('s_cmp_ge_u32 s2, 576')
    p.I('s_cbranch_scc1 L_vf')
    p.I('s_cmp_ge_u32 s2, 512')
    p.I('s_cbranch_scc1 L_kf')
    p.I('s_load_dwordx2 s[4:5], s[0:1], 0')
    p.I('s_load_dwordx2 s[6:7], s[0:1], 96')
    p.I('s_load_dwordx4 s[20:23], s[0:1], 24')
    p.I('v_lshrrev_b32 v1, 6, v0')
    p.I('v_and_b32 v2, 63, v0')
    p.I('v_readfirstlane_b32 s34, v1')
    p.I('s_lshl_b32 s3, s2, 2')
    p.I('v_add_u32 v1, s3, v1')
    p.I('v_lshlrev_b32 v1, 10, v1')
    p.I('v_lshl_add_u32 v1, v2, 4, v1')
    p.I('s_waitcnt lgkmcnt(0)')
    srd(p, 8, 4, 5, 2 << 20)
    srd(p, 12, 6, 7, 4 << 20)
    p.I('buffer_load_dwordx4 v[8:11], v1, s[8:11], 0 offen')
    srd(p, 24, 20, 21, 4 << 20)
    srd(p, 28, 22, 23, 4 << 20)
    p.I('s_and_b32 s32, s2, 7')
    p.I('s_lshr_b32 s33, s2, 3')
    p.I('s_lshl_b32 s33, s33, 2')
    p.I('s_add_u32 s33, s33, s34')
    p.I('v_and_b32 v4, 15, v2')
    p.I('v_lshrrev_b32 v5, 3, v4')
    p.I('v_and_b32 v6, 7, v4')
    p.I('v_lshlrev_b32 v6, 7, v6')
    p.I('v_lshl_add_u32 v5, v5, 13, v6')
    p.I('s_lshl_b32 s35, s33, 14')
    p.I('s_lshl_b32 s36, s32, 10')
    p.I('s_add_u32 s35, s35, s36')
    p.I('buffer_load_dword v44, v5, s[24:27], s35 offen')
    p.I('v_lshlrev_b32 v5, 7, v4')
    p.I('s_lshl_b32 s35, s33, 11')
    p.I('s_lshl_b32 s36, s32, 19')
    p.I('s_add_u32 s35, s35, s36')
    p.I('buffer_load_dword v45, v5, s[28:31], s35 offen')
    p.I('s_mov_b32 s16, 0xffff0000')
    p.I(f's_mov_b32 s17, {f32hex(1.0/512)}')
    p.I(f's_mov_b32 s18, {f32hex(1e-5)}')
    E = 16
    def unpack(src):
        for i in range(4):
            p.I(f'v_lshlrev_b32 v{E+2*i}, 16, v{src+i}')
            p.I(f'v_and_b32 v{E+2*i+1}, s16, v{src+i}')
    def rb(v):
        p.I(f'v_cvt_pk_bf16_f32 v{v}, v{v}, v{v}')
        p.I(f'v_lshlrev_b32 v{v}, 16, v{v}')
    def ln(dst):
        p.I(f'v_add_f32 v3, v{E}, v{E+1}')
        for i in range(2, 8): p.I(f'v_add_f32 v3, v3, v{E+i}')
        allreduce(p, 'v_add_f32', 3, 4)
        p.I('v_mul_f32 v3, s17, v3')
        for i in range(8): p.I(f'v_sub_f32 v{24+i}, v{E+i}, v3')
        p.I('v_mul_f32 v5, v24, v24')
        for i in range(1, 8): p.I(f'v_fmac_f32 v5, v{24+i}, v{24+i}')
        allreduce(p, 'v_add_f32', 5, 4)
        p.I('v_mul_f32 v5, s17, v5')
        rb(3); rb(5)
        p.I('v_add_f32 v5, s18, v5'); rb(5)
        p.I('v_sqrt_f32 v5, v5'); rb(5)
        p.I('v_rcp_f32 v5, v5')
        for i in range(8): p.I(f'v_sub_f32 v{24+i}, v{E+i}, v3')
        for i in range(4): p.I(f'v_cvt_pk_bf16_f32 v{32+i}, v{24+2*i}, v{24+2*i+1}')
        for i in range(4):
            p.I(f'v_lshlrev_b32 v{24+2*i}, 16, v{32+i}')
            p.I(f'v_and_b32 v{24+2*i+1}, s16, v{32+i}')
        for i in range(8): p.I(f'v_mul_f32 v{24+i}, v{24+i}, v5')
        for i in range(4): p.I(f'v_cvt_pk_bf16_f32 v{dst+i}, v{24+2*i}, v{24+2*i+1}')
    unpack(8)
    ln(36)
    p.I('buffer_store_dwordx4 v[36:39], v1, s[12:15], 0 offen')
    unpack(36)
    ln(40)
    p.I(f's_mov_b32 s19, {WS_H}')
    p.I('buffer_store_dwordx4 v[40:43], v1, s[12:15], s19 offen')
    p.I('s_endpgm')
    p.L('L_kf:')
    p.I('s_load_dwordx2 s[4:5], s[0:1], 8')
    p.I('s_load_dwordx2 s[6:7], s[0:1], 96')
    p.I('s_sub_u32 s3, s2, 512')
    p.I('s_and_b32 s32, s3, 7')
    p.I('s_lshr_b32 s33, s3, 3')
    p.I('v_lshrrev_b32 v1, 4, v0')
    p.I('v_and_b32 v2, 15, v0')
    p.I('s_waitcnt lgkmcnt(0)')
    srd(p, 8, 4, 5, 4 << 20)
    srd(p, 12, 6, 7, 1 << 20, WS_KF)
    p.I('s_lshl_b32 s35, s32, 19')
    p.I('s_lshl_b32 s36, s33, 14')
    p.I('s_add_u32 s35, s35, s36')
    p.I(f's_add_u32 s35, s35, {1536*256}')
    p.I('v_lshlrev_b32 v3, 4, v0')
    for it in range(4):
        p.I(f'buffer_load_dwordx4 v[{8+4*it}:{11+4*it}], v3, s[8:11], s35 offen offset:{0}' if it == 0 else
            f'buffer_load_dwordx4 v[{8+4*it}:{11+4*it}], v{31+it}, s[8:11], s35 offen')
        if it < 3: p.I(f'v_add_u32 v{32+it}, {4096*(it+1)}, v3')
    p.I('s_lshl_b32 s35, s32, 17')
    p.I('s_add_u32 s35, s35, s36')
    p.I('v_lshrrev_b32 v4, 1, v2')
    p.I('v_and_b32 v5, 1, v2')
    p.I('v_lshlrev_b32 v4, 10, v4')
    p.I('v_lshl_add_u32 v4, v5, 9, v4')
    for it in range(4):
        p.I(f'v_add_u32 v6, {16*(it%2)}, v1')
        pi_row(p, 6, 7, 24)
        p.I('v_lshl_add_u32 v7, v7, 4, v4')
        p.I(f'v_add_u32 v{40+it}, {8192*(it//2)}, v7')
        p.I(f'buffer_store_dwordx4 v[{8+4*it}:{11+4*it}], v{40+it}, s[12:15], s35 offen')
    p.I('s_endpgm')
    p.L('L_vf:')
    p.I('s_load_dwordx2 s[4:5], s[0:1], 16')
    p.I('s_load_dwordx2 s[6:7], s[0:1], 96')
    p.I('s_sub_u32 s3, s2, 576')
    p.I('s_and_b32 s32, s3, 7')
    p.I('s_lshr_b32 s33, s3, 3')
    p.I('v_and_b32 v1, 63, v0')
    p.I('v_lshrrev_b32 v2, 6, v0')
    pi_row(p, 1, 3, 4)
    p.I('v_lshl_add_u32 v3, v2, 5, v3')
    p.I('v_lshlrev_b32 v3, 1, v3')
    p.I('v_lshrrev_b32 v4, 5, v1')
    p.I('v_lshl_add_u32 v3, v4, 11, v3')
    p.I('s_waitcnt lgkmcnt(0)')
    srd(p, 8, 4, 5, 4 << 20)
    srd(p, 12, 6, 7, 1 << 20, WS_VF)
    p.I('s_lshl_b32 s35, s32, 19')
    p.I('s_lshl_b32 s36, s33, 12')
    p.I('s_add_u32 s35, s35, s36')
    p.I(f's_add_u32 s35, s35, {1536*256}')
    for j in range(8):
        p.I(f'buffer_load_ushort v{16+j}, v3, s[8:11], s35 offen offset:{256*j}')
    p.I('s_lshl_b32 s35, s32, 17')
    p.I('s_add_u32 s35, s35, s36')
    p.I('v_lshlrev_b32 v5, 4, v0')
    for j in range(4):
        p.I(f'v_lshl_or_b32 v{8+j}, v{17+2*j}, 16, v{16+2*j}')
    p.I('buffer_store_dwordx4 v[8:11], v5, s[12:15], s35 offen')
    p.L('L_ln_done:')
    p.I('s_endpgm')
    return p.finalize()

def gemm64(p, tag, nst, a_kind, sA, sB, a_stride, b_stride, s_aoff, s_boff, a_step, b_step, hooks, gate=None, bflag=''):
    NS = 5
    L = 1
    ACC = 64
    st = STAMPS and (tag == STAG or (STAG == 'both' and tag == 'g1'))
    p.I('s_lshr_b32 s37, s34, 2')
    p.I('s_bfe_u32 s35, s34, 0x10001')
    p.I('s_and_b32 s36, s34, 1')
    def dma128(dst0, stride):
        p.I(f'v_lshrrev_b32 v252, 3, v{L}')
        p.I(f'v_and_b32 v253, 7, v{L}')
        p.I(f'v_bfe_u32 v254, v{L}, 4, 1')
        p.I(f'v_lshlrev_b32 v254, 2, v254')
        p.I(f'v_xor_b32 v253, v253, v254')
        p.I(f's_mov_b32 s38, {stride}')
        p.I(f'v_mul_lo_u32 v252, v252, s38')
        p.I(f'v_lshl_add_u32 v{dst0}, v253, 4, v252')
        p.I(f'v_add_u32 v{dst0+1}, {8*stride - 1024}, v{dst0}')
    dma128(2, b_stride)
    if a_kind == 'tr':
        dma128(4, a_stride)
    else:
        p.I(f'v_lshrrev_b32 v252, 4, v{L}')
        p.I('s_and_b32 s38, s34, 1')
        p.I('s_lshl_b32 s38, s38, 3')
        p.I(f'v_and_b32 v253, 15, v{L}')
        p.I(f's_mov_b32 s39, {a_stride}')
        for i in range(2):
            p.I(f'v_add_u32 v254, {4*i}, v252')
            p.I('v_add_u32 v255, s38, v254')
            p.I('v_xor_b32 v255, v253, v255')
            p.I('v_mul_lo_u32 v254, v254, s39')
            p.I(f'v_lshl_add_u32 v{4+i}, v255, 4, v254')
            if i: p.I(f'v_subrev_u32 v{4+i}, {1024*i}, v{4+i}')
    p.I('s_lshl_b32 s39, s34, 11')
    def loads(e, n, parts='ab'):
        sl = (n % NS) * 32768
        if 'a' in parts:
            e.I(f's_add_u32 m0, s39, {sl}')
            e.I(f's_add_u32 s40, s{s_aoff}, {n*a_step}')
            e.I(f'buffer_load_dwordx4 v4, s[{sA}:{sA+3}], s40 offen lds')
            e.I(f'buffer_load_dwordx4 v5, s[{sA}:{sA+3}], s40 offen offset:1024 lds')
        if 'b' in parts:
            e.I(f's_add_u32 m0, s39, {sl+16384}')
            e.I(f's_add_u32 s41, s{s_boff}, {n*b_step}')
            e.I(f'buffer_load_dwordx4 v2, s[{sB}:{sB+3}], s41 offen{bflag} lds')
            e.I(f'buffer_load_dwordx4 v3, s[{sB}:{sB+3}], s41 offen offset:1024{bflag} lds')
    if st:
        p.I('s_memtime s[60:61]')
        p.I('s_memrealtime s[62:63]')
    issued = 0; last = {}
    if gate is None:
        for n in range(NS - 1):
            loads(p, n); issued += 4; last[n] = issued
    else:
        gate(0)
        for n in range(NS - 1): loads(p, n, 'a')
        gate(1)
        for n in range(NS - 1):
            loads(p, n, 'b'); issued += 2; last[n] = issued
    e = Cap(); hooks(e, -1)
    for t in e.l: p.I(t)
    issued += nvm(e.l)
    tr_lane_bits(p, L, 128, False, 252, 253, 254)
    p.I('s_lshl_b32 s38, s36, 6')
    p.I('v_add_u32 v253, s38, v253')
    p.I(f'v_bfe_u32 v254, v{L}, 3, 1')
    p.I('v_lshlrev_b32 v254, 6, v254')
    p.I('v_xor_b32 v253, v253, v254')
    p.I('v_add_u32 v6, v252, v253')
    p.I('s_lshl_b32 s38, s37, 13')
    p.I('v_add_u32 v6, s38, v6')
    if a_kind == 'tr':
        tr_lane_bits(p, L, 128, True, 252, 253, 254)
        p.I('s_lshl_b32 s42, s35, 6')
        p.I('v_add_u32 v253, s42, v253')
        p.I(f'v_bfe_u32 v254, v{L}, 3, 1')
        p.I('v_lshlrev_b32 v254, 6, v254')
        p.I('v_xor_b32 v253, v253, v254')
        p.I('v_add_u32 v7, v252, v253')
        p.I('v_add_u32 v7, s38, v7')
        nA = 1
    else:
        pi_row(p, L, 252, 253)
        p.I('s_lshl_b32 s42, s35, 5')
        p.I('v_add_u32 v252, s42, v252')
        p.I('v_and_b32 v253, 15, v252')
        p.I(f'v_lshrrev_b32 v254, 5, v{L}')
        p.I('v_xor_b32 v253, v253, v254')
        p.I('s_lshl_b32 s42, s37, 3')
        p.I('v_xor_b32 v253, s42, v253')
        p.I('v_lshlrev_b32 v253, 4, v253')
        p.I('v_lshl_add_u32 v252, v252, 8, v253')
        for kq in range(4):
            p.I(f'v_xor_b32 v{7+kq}, {32*kq}, v252')
        nA = 4
    BUF = [128, 160]
    def mfmas(n):
        b = BUF[n % 2]
        r = []
        for kq in range(4):
            c = '0' if (n == 0 and kq == 0) else vr(ACC, 16)
            r.append(f'{MFMA} {vr(ACC,16)}, {vr(b+8*kq,4)}, {vr(b+8*kq+4,4)}, {c}')
        return r
    for n in range(nst):
        sl = (n % NS) * 32768
        p.I(f's_waitcnt vmcnt({issued - last[n]}) lgkmcnt(0)')
        if st: p.I(f'v_writelane_b32 v0, s60, {n}')
        p.I('s_barrier')
        if st: p.I('s_memtime s[60:61]')
        b = BUF[n % 2]
        p.I(f'v_add_u32 v240, {sl}, v6')
        for i in range(nA): p.I(f'v_add_u32 v{241+i}, {sl}, v{7+i}')
        e = Cap()
        for kq in range(4):
            if a_kind == 'tr':
                e.I(f'ds_read_b64_tr_b16 {vr(b+8*kq,2)}, v241 offset:{kq*2048}')
                e.I(f'ds_read_b64_tr_b16 {vr(b+8*kq+2,2)}, v241 offset:{kq*2048+512}')
            else:
                e.I(f'ds_read_b128 {vr(b+8*kq,4)}, v{241+kq}')
            e.I(f'ds_read_b64_tr_b16 {vr(b+8*kq+4,2)}, v240 offset:{16384+kq*2048}')
            e.I(f'ds_read_b64_tr_b16 {vr(b+8*kq+6,2)}, v240 offset:{16384+kq*2048+512}')
        if n + NS - 1 < nst:
            loads(e, n + NS - 1); issued += 4; last[n + NS - 1] = issued
        e2 = Cap(); hooks(e2, n); issued += nvm(e2.l)
        e.l += e2.l
        if n > 0: merge(p, mfmas(n - 1), e.l)
        else:
            for t in e.l: p.I(t)
    for t in mfmas(nst - 1): p.I(t)
    eb = (nst % NS) * 32768
    p.I('s_lshl_b32 s38, s34, 12')
    p.I(f'v_lshlrev_b32 v252, 4, v{L}')
    p.I('v_add_u32 v253, s38, v252')
    p.I(f'v_add_u32 v253, {eb}, v253')
    for q in range(4):
        p.I(f'ds_write_b128 v253, {vr(ACC+4*q,4)} offset:{q*1024}')
    p.I('s_and_b32 s38, s34, 3')
    p.I('s_lshl_b32 s38, s38, 12')
    p.I('s_lshl_b32 s40, s37, 11')
    p.I('s_add_u32 s38, s38, s40')
    p.I('v_add_u32 v253, s38, v252')
    p.I(f'v_add_u32 v253, {eb}, v253')
    p.I('s_waitcnt lgkmcnt(0)')
    p.I('s_barrier')
    p.I(f'ds_read_b128 v[64:67], v253')
    p.I(f'ds_read_b128 v[68:71], v253 offset:1024')
    p.I(f'ds_read_b128 v[72:75], v253 offset:16384')
    p.I(f'ds_read_b128 v[76:79], v253 offset:17408')
    for j in range(8):
        p.I(f'v_add_f32 v{64+j}, v{64+j}, v{72+j}')

def gen_main():
    p = Prog()
    st = STAMPS and STAG in ('main', 'both')
    p.I('s_cmp_ge_u32 s2, 480')
    p.I('s_cbranch_scc1 L_main_done')
    p.I('s_cmp_ge_u32 s2, 256')
    p.I('s_cbranch_scc1 L_gemm1')
    p.I('s_load_dwordx2 s[92:93], s[0:1], 88')
    p.I('s_load_dwordx2 s[58:59], s[0:1], 0')
    p.I('s_load_dwordx4 s[68:71], s[0:1], 8')
    p.I('s_load_dwordx4 s[44:47], s[0:1], 24')
    p.I('s_load_dwordx2 s[4:5], s[0:1], 48')
    p.I('s_load_dwordx2 s[48:49], s[0:1], 96')
    L = 1
    lane_setup(p)
    p.I('s_and_b32 s32, s2, 7')
    p.I('s_lshr_b32 s33, s2, 3')
    p.I('s_waitcnt lgkmcnt(0)')
    srd(p, 8, 48, 49, 2 << 20, WS_H)
    srd(p, 12, 68, 69, 4 << 20)
    srd(p, 72, 70, 71, 4 << 20)
    srd(p, 76, 58, 59, 2 << 20)
    srd(p, 96, 92, 93, 256)
    srd(p, 16, 4, 5, 2048*1792*2)
    srd(p, 20, 44, 45, 4 << 20)
    srd(p, 24, 46, 47, 4 << 20)
    srd(p, 28, 48, 49, 16 << 20, WS_PART)
    p.I('s_lshr_b32 s35, s34, 1')
    p.I('s_and_b32 s36, s34, 1')
    c = LOG2E / math.sqrt(128.0)
    p.I(f's_mov_b32 s50, {f32hex(c)}')
    p.I(f's_mov_b32 s51, {f32hex(8.0)}')
    SLOT = lambda n: 65536 + (n % 3) * 32768
    ACC = 64; QB = 128; S = [160, 192]; NM = 224; STG = 32
    vDq = 2; vDk = 6; vDv = 8; vAq = 9; vXq = 13; vK = 14; vV = 22; vL16 = 26
    vl, va, vmx, vt = 27, 28, 30, 31
    CUR = 240
    p.I(f'v_lshlrev_b32 v{vL16}, 4, v{L}')
    XR = 32
    p.I('s_lshl_b32 s57, s33, 16')
    p.I('s_lshl_b32 s40, s34, 13')
    p.I('s_add_u32 s57, s57, s40')
    p.I(f'v_lshrrev_b32 v252, 3, v{L}')
    p.I(f'v_and_b32 v253, 7, v{L}')
    p.I('v_lshlrev_b32 v254, 4, v253')
    p.I('v_lshl_add_u32 v254, v252, 10, v254')
    for i in range(8):
        p.I(f'buffer_load_dwordx4 {vr(XR+4*i,4)}, v254, s[76:79], s57 offen offset:{128*i}')
    p.I('s_lshl_b32 s56, s34, 3')
    p.I('v_add_u32 v252, s56, v252')
    p.I('v_bfe_u32 v254, v252, 1, 3')
    p.I('v_xor_b32 v253, v253, v254')
    p.I('v_lshlrev_b32 v253, 4, v253')
    p.I('v_lshl_add_u32 v239, v252, 7, v253')
    for i in range(4):
        p.I(f'v_xor_b32 v{vDq+i}, {4*i}, v{L}')
        p.I(f'v_lshlrev_b32 v{vDq+i}, 4, v{vDq+i}')
        if i: p.I(f'v_add_u32 v{vDq+i}, {7168*i}, v{vDq+i}')
    p.I('s_lshl_b32 s39, s36, 3')
    p.I(f'v_lshrrev_b32 v252, 4, v{L}')
    p.I(f'v_and_b32 v253, 15, v{L}')
    for i in range(2):
        p.I(f's_add_u32 s40, s39, {4*i}')
        p.I('v_add_u32 v254, s40, v252')
        p.I('v_xor_b32 v254, v253, v254')
        p.I('v_lshlrev_b32 v254, 4, v254')
        p.I(f'v_lshl_add_u32 v{vDk+i}, v252, 8, v254')
    p.I('v_lshlrev_b32 v254, 2, v252')
    p.I('v_xor_b32 v254, v253, v254')
    p.I('v_lshlrev_b32 v254, 4, v254')
    p.I(f'v_lshl_add_u32 v{vDv}, v252, 8, v254')
    p.I('s_lshl_b32 s41, s34, 12')
    p.I('s_lshl_b32 s42, s34, 11')
    p.I('s_lshl_b32 s52, s34, 15')
    p.I('s_lshl_b32 s40, s32, 10')
    p.I('s_add_u32 s52, s52, s40')
    p.I('s_lshl_b32 s53, s32, 19')
    p.I('s_add_u32 s53, s53, s42')
    p.I(f's_add_u32 s53, s53, {1536*256}')
    p.I('s_lshl_b32 s54, s32, 19')
    p.I('s_add_u32 s54, s54, s41')
    stages = [('Q', n) for n in range(16)] + [('T', n) for n in range(9)] + [('W', n) for n in range(16)]
    def loads(k, e):
        if k >= len(stages): return
        kind, n = stages[k]
        sl = SLOT(k)
        if kind == 'Q':
            e.I(f's_add_u32 m0, s41, {sl}')
            e.I(f's_add_u32 s40, s52, {n*262144}')
            for i in range(4):
                e.I(f'buffer_load_dwordx4 v{vDq+i}, s[20:23], s40 offen offset:{1024*i} lds')
        elif kind == 'W':
            e.I(f's_add_u32 m0, s41, {sl}')
            e.I(f's_add_u32 s40, s54, {n*32768}')
            for i in range(4):
                e.I(f'buffer_load_dwordx4 v{vDq+i}, s[24:27], s40 offen offset:{1024*i} lds')
        else:
            if n < 8:
                e.I(f's_add_u32 m0, s42, {sl}')
                e.I(f's_add_u32 s40, s53, {n*16384}')
                for i in range(2):
                    e.I(f'buffer_load_dwordx4 v{vDk+i}, s[12:15], s40 offen offset:{1024*i} lds')
            if n > 0:
                e.I(f's_add_u32 m0, s42, {sl+16384}')
                e.I(f's_add_u32 s43, s53, {(n-1)*16384}')
                for i in range(2):
                    e.I(f'buffer_load_dwordx4 v{vDv}, s[72:75], s43 offen offset:{1024*i} lds')
    cnt = {'issued': 8}; last = {}
    def track(k, e):
        e0 = Cap(); loads(k, e0)
        cnt['issued'] += nvm(e0.l); last[k] = cnt['issued']
        e.l += e0.l
    def extra(e, e0):
        cnt['issued'] += nvm(e0.l); e.l += e0.l
    if st:
        p.I('s_memtime s[60:61]')
        p.I('s_memrealtime s[62:63]')
    e = Cap()
    track(0, e); track(1, e)
    def warm(e0, what):
        e0.I('s_lshl_b32 s94, s33, 3')
        e0.I('s_add_u32 s94, s94, s34')
        e0.I(f'v_and_b32 v252, 15, v{L}')
        if what == 'wq':
            e0.I('v_lshrrev_b32 v253, 3, v252')
            e0.I('v_and_b32 v254, 7, v252')
            e0.I('v_lshlrev_b32 v254, 7, v254')
            e0.I('v_lshl_add_u32 v253, v253, 13, v254')
            e0.I('s_lshl_b32 s94, s94, 14')
            e0.I('s_lshl_b32 s95, s32, 10')
            e0.I('s_add_u32 s94, s94, s95')
            e0.I('buffer_load_dword v248, v253, s[20:23], s94 offen')
        elif what == 'kv':
            e0.I('v_lshlrev_b32 v253, 7, v252')
            e0.I('v_and_b32 v253, 0x180, v253')
            e0.I('s_lshl_b32 s95, s32, 19')
            e0.I('s_lshl_b32 s94, s94, 9')
            e0.I('s_add_u32 s94, s94, s95')
            e0.I(f's_add_u32 s94, s94, {1536*256}')
            e0.I('buffer_load_dword v249, v253, s[12:15], s94 offen')
            e0.I('buffer_load_dword v250, v253, s[72:75], s94 offen')
        else:
            e0.I('v_lshlrev_b32 v253, 7, v252')
            e0.I('s_lshl_b32 s95, s32, 19')
            e0.I('s_lshl_b32 s94, s94, 11')
            e0.I('s_add_u32 s94, s94, s95')
            e0.I('buffer_load_dword v255, v253, s[24:27], s94 offen')
    e0 = Cap(); warm(e0, 'wq'); warm(e0, 'kv')
    extra(e, e0)
    for t in e.l: p.I(t)
    tr_lane_bits(p, L, 1024, True, 252, 253, 254)
    p.I(f'v_bfe_u32 v254, v{L}, 2, 2')
    p.I('v_lshlrev_b32 v254, 6, v254')
    p.I('s_lshl_b32 s40, s35, 8')
    p.I('v_add_u32 v255, s40, v253')
    p.I('v_add_u32 v255, v255, v252')
    p.I('v_add_u32 v255, v255, v254')
    for t in range(4):
        p.I(f'v_xor_b32 v{vAq+t}, {64*t}, v255')
    p.I(f'v_and_b32 v252, 31, v{L}')
    p.I(f'v_lshrrev_b32 v253, 5, v{L}')
    p.I('v_bfe_u32 v254, v252, 1, 3')
    p.I('v_xor_b32 v254, v254, v253')
    p.I('v_lshlrev_b32 v254, 4, v254')
    p.I('v_lshl_add_u32 v254, v252, 7, v254')
    p.I('s_lshl_b32 s40, s36, 12')
    p.I(f'v_add_u32 v{vXq}, s40, v254')
    pi_row(p, L, 252, 254)
    p.I('v_and_b32 v254, 15, v252')
    p.I('v_xor_b32 v254, v254, v253')
    p.I('v_lshlrev_b32 v254, 4, v254')
    p.I('v_lshl_add_u32 v254, v252, 8, v254')
    for k in range(8):
        p.I(f'v_xor_b32 v{vK+k}, {32*k}, v254')
    tr_lane_bits(p, L, 256, True, 252, 253, 254)
    p.I(f'v_bfe_u32 v254, v{L}, 2, 2')
    p.I('v_lshlrev_b32 v254, 6, v254')
    p.I('v_add_u32 v255, v252, v253')
    p.I('v_add_u32 v255, v255, v254')
    for t in range(4):
        p.I(f'v_xor_b32 v{vV+t}, {64*t}, v255')
    p.I('s_mov_b32 s88, 0xffff0000')
    p.I(f's_mov_b32 s89, {f32hex(1.0/512)}')
    p.I(f's_mov_b32 s90, {f32hex(1e-5)}')
    def pr(a): return f'v[{a}:{a+1}]'
    def rbf(e, v):
        e.I(f'v_cvt_pk_bf16_f32 v{v}, v{v}, v{v}')
        e.I(f'v_lshlrev_b32 v{v}, 16, v{v}')
    def stats(e, A, B):
        e.I(f'v_mul_f32 v{B}, s89, v{B}')
        rbf(e, A); rbf(e, B)
        e.I(f'v_add_f32 v{B}, s90, v{B}'); rbf(e, B)
        e.I(f'v_sqrt_f32 v{B}, v{B}'); rbf(e, B)
        e.I(f'v_rcp_f32 v{B}, v{B}')
    E = 64; Dd = 128; A = 192; B = 194; P0 = 196; P1 = 198
    def red8(v):
        for mod in ('quad_perm:[1,0,3,2]', 'quad_perm:[2,3,0,1]', 'row_half_mirror'):
            p.I(f'v_add_f32_dpp v{v}, v{v}, v{v} {mod} row_mask:0xf bank_mask:0xf')
    for i in range(32):
        p.I(f'v_lshlrev_b32 v{E+2*i}, 16, v{XR+i}')
        p.I(f'v_and_b32 v{E+2*i+1}, s88, v{XR+i}')
    p.I(f'v_pk_add_f32 {pr(P0)}, {pr(E)}, {pr(E+2)}')
    p.I(f'v_pk_add_f32 {pr(P1)}, {pr(E+4)}, {pr(E+6)}')
    for i in range(4, 32, 2):
        p.I(f'v_pk_add_f32 {pr(P0)}, {pr(P0)}, {pr(E+2*i)}')
        p.I(f'v_pk_add_f32 {pr(P1)}, {pr(P1)}, {pr(E+2*i+2)}')
    p.I(f'v_pk_add_f32 {pr(P0)}, {pr(P0)}, {pr(P1)}')
    p.I(f'v_add_f32 v{A}, v{P0}, v{P0+1}')
    red8(A)
    p.I(f'v_mul_f32 v{A}, s89, v{A}')
    for i in range(32): p.I(f'v_pk_add_f32 {pr(Dd+2*i)}, {pr(E+2*i)}, {pr(A)} op_sel_hi:[1,0] neg_lo:[0,1] neg_hi:[0,1]')
    p.I(f'v_pk_mul_f32 {pr(P0)}, {pr(Dd)}, {pr(Dd)}')
    p.I(f'v_pk_mul_f32 {pr(P1)}, {pr(Dd+2)}, {pr(Dd+2)}')
    for i in range(2, 32, 2):
        p.I(f'v_pk_fma_f32 {pr(P0)}, {pr(Dd+2*i)}, {pr(Dd+2*i)}, {pr(P0)}')
        p.I(f'v_pk_fma_f32 {pr(P1)}, {pr(Dd+2*i+2)}, {pr(Dd+2*i+2)}, {pr(P1)}')
    p.I(f'v_pk_add_f32 {pr(P0)}, {pr(P0)}, {pr(P1)}')
    p.I(f'v_add_f32 v{B}, v{P0}, v{P0+1}')
    red8(B)
    stats(p, A, B)
    for i in range(8):
        for j in range(4): p.I(f'v_pk_add_f32 {pr(Dd+8*i+2*j)}, {pr(E+8*i+2*j)}, {pr(A)} op_sel_hi:[1,0] neg_lo:[0,1] neg_hi:[0,1]')
        for j in range(4): p.I(f'v_cvt_pk_bf16_f32 v{E+8*i+j}, v{Dd+8*i+2*j}, v{Dd+8*i+2*j+1}')
        for j in range(4):
            p.I(f'v_lshlrev_b32 v{Dd+8*i+2*j}, 16, v{E+8*i+j}')
            p.I(f'v_and_b32 v{Dd+8*i+2*j+1}, s88, v{E+8*i+j}')
        for j in range(4): p.I(f'v_pk_mul_f32 {pr(Dd+8*i+2*j)}, {pr(Dd+8*i+2*j)}, {pr(B)} op_sel_hi:[1,0]')
        for j in range(4): p.I(f'v_cvt_pk_bf16_f32 v{XR+4*i+j}, v{Dd+8*i+2*j}, v{Dd+8*i+2*j+1}')
        p.I(f'ds_write_b128 v239, {vr(XR+4*i,4)} offset:{8192*i}')
    def ln2_code():
        e = Cap()
        E2 = 32; D2 = 40; A2 = 48; B2 = 49; T2 = 50; SRC = 52; DST = 56
        e.I('s_add_u32 s91, s56, s32')
        e.I('s_bfe_u32 s94, s91, 0x30001')
        e.I(f'v_and_b32 v60, 7, v{L}')
        e.I('v_xor_b32 v60, s94, v60')
        e.I('v_lshlrev_b32 v60, 4, v60')
        e.I(f'v_lshrrev_b32 v61, 3, v{L}')
        e.I('v_lshl_add_u32 v60, v61, 13, v60')
        e.I('s_lshl_b32 s94, s91, 7')
        e.I('v_add_u32 v60, s94, v60')
        e.I(f'ds_read_b128 {vr(SRC,4)}, v60')
        for i in range(4):
            e.I(f'v_lshlrev_b32 v{E2+2*i}, 16, v{SRC+i}')
            e.I(f'v_and_b32 v{E2+2*i+1}, s88, v{SRC+i}')
        e.I(f'v_add_f32 v{A2}, v{E2}, v{E2+1}')
        for i in range(2, 8): e.I(f'v_add_f32 v{A2}, v{A2}, v{E2+i}')
        allreduce(e, 'v_add_f32', A2, T2)
        e.I(f'v_mul_f32 v{A2}, s89, v{A2}')
        for i in range(8): e.I(f'v_sub_f32 v{D2+i}, v{E2+i}, v{A2}')
        e.I(f'v_mul_f32 v{B2}, v{D2}, v{D2}')
        for i in range(1, 8): e.I(f'v_fmac_f32 v{B2}, v{D2+i}, v{D2+i}')
        allreduce(e, 'v_add_f32', B2, T2)
        stats(e, A2, B2)
        for i in range(8): e.I(f'v_sub_f32 v{D2+i}, v{E2+i}, v{A2}')
        for i in range(4): e.I(f'v_cvt_pk_bf16_f32 v{E2+i}, v{D2+2*i}, v{D2+2*i+1}')
        for i in range(4):
            e.I(f'v_lshlrev_b32 v{D2+2*i}, 16, v{E2+i}')
            e.I(f'v_and_b32 v{D2+2*i+1}, s88, v{E2+i}')
        for i in range(8): e.I(f'v_mul_f32 v{D2+i}, v{D2+i}, v{B2}')
        for i in range(4): e.I(f'v_cvt_pk_bf16_f32 v{DST+i}, v{D2+2*i}, v{D2+2*i+1}')
        e.I('s_lshl_b32 s94, s32, 10')
        e.I('s_add_u32 s94, s94, s57')
        e.I(f'buffer_store_dwordx4 {vr(DST,4)}, v{vL16}, s[8:11], s94 offen sc1')
        return e.l
    LN2 = ln2_code()
    LN2_ST = [1, 2, 3, 4]
    HPUB = 7

    QBUF = [128, 168]
    WBUF = [128, 160]
    def top(k):
        p.I(f's_waitcnt vmcnt({cnt["issued"] - last[k]}) lgkmcnt(0)')
        if st: p.I(f'v_writelane_b32 v0, s60, {k}')
        p.I('s_barrier')
        if st: p.I('s_memtime s[60:61]')
    def q_reads(k, n, e):
        b = QBUF[n % 2]; sl = SLOT(k)
        for t in range(4): p.I(f'v_add_u32 v{CUR+t}, {sl}, v{vAq+t}')
        for kk in range(2): p.I(f'v_xor_b32 v{CUR+4+kk}, {(4*(n%2)+2*kk)*16}, v{vXq}')
        for kk in range(2):
            e.I(f'ds_read_b128 {vr(b+4*kk,4)}, v{CUR+4+kk} offset:{(n//2)*8192}')
            for t in range(4):
                a = b + 8 + 16*kk + 4*t
                e.I(f'ds_read_b64_tr_b16 {vr(a,2)}, v{CUR+t} offset:{kk*16384}')
                e.I(f'ds_read_b64_tr_b16 {vr(a+2,2)}, v{CUR+t} offset:{kk*16384+4096}')
    def q_mfmas(n):
        b = QBUF[n % 2]
        r = []
        for kk in range(2):
            for t in range(4):
                cc = '0' if (n == 0 and kk == 0) else vr(ACC+16*t, 16)
                r.append(f'{MFMA} {vr(ACC+16*t,16)}, {vr(b+8+16*kk+4*t,4)}, {vr(b+4*kk,4)}, {cc}')
        return r
    vAw = 9; vXw = 11
    def w_setup():
        for i in range(4):
            p.I(f'v_xor_b32 v{vDq+i}, {4*i}, v{L}')
            p.I(f'v_lshlrev_b32 v{vDq+i}, 4, v{vDq+i}')
    def w_setup2():
        tr_lane_bits(p, L, 1024, True, 252, 253, 254)
        p.I(f'v_bfe_u32 v254, v{L}, 2, 2')
        p.I('v_lshlrev_b32 v254, 6, v254')
        p.I('s_lshl_b32 s40, s34, 7')
        p.I('v_add_u32 v253, s40, v253')
        for ta in range(2):
            p.I(f'v_add_u32 v255, {64*ta}, v253')
            p.I('v_xor_b32 v255, v255, v254')
            p.I(f'v_add_u32 v{vAw+ta}, v255, v252')
        p.I('s_lshl_b32 s40, s36, 12')
        p.I(f'v_subrev_u32 v{vXw}, s40, v{vXq}')
    def w_reads(k, n, e):
        b = WBUF[n % 2]; sl = SLOT(k)
        for ta in range(2): p.I(f'v_add_u32 v{CUR+ta}, {sl}, v{vAw+ta}')
        for kk in range(2): p.I(f'v_xor_b32 v{CUR+4+kk}, {(4*(n%2)+2*kk)*16}, v{vXw}')
        for kk in range(2):
            for tb in range(2):
                e.I(f'ds_read_b128 {vr(b+16*kk+4*tb,4)}, v{CUR+4+kk} offset:{(n//2)*8192 + tb*4096}')
            for ta in range(2):
                a = b + 16*kk + 8 + 4*ta
                e.I(f'ds_read_b64_tr_b16 {vr(a,2)}, v{CUR+ta} offset:{kk*16384}')
                e.I(f'ds_read_b64_tr_b16 {vr(a+2,2)}, v{CUR+ta} offset:{kk*16384+4096}')
    def w_mfmas(n):
        b = WBUF[n % 2]
        r = []
        for kk in range(2):
            for ta in range(2):
                for tb in range(2):
                    d = ACC + 16*(2*ta+tb)
                    cc = '0' if (n == 0 and kk == 0) else vr(d, 16)
                    r.append(f'{MFMA} {vr(d,16)}, {vr(b+16*kk+8+4*ta,4)}, {vr(b+16*kk+4*tb,4)}, {cc}')
        return r
    def g1_warm(e):
        e.I('s_lshl_b32 s40, s33, 3')
        e.I('s_add_u32 s40, s40, s34')
        e.I(f'v_lshrrev_b32 v252, 2, v{L}')
        e.I(f'v_and_b32 v252, 7, v252')
        e.I('s_mov_b32 s43, 3584')
        e.I('v_mul_lo_u32 v252, v252, s43')
        e.I(f'v_and_b32 v253, 3, v{L}')
        e.I('v_lshlrev_b32 v253, 3, v253')
        e.I('v_add_u32 v253, s32, v253')
        e.I('s_lshr_b32 s55, s32, 1')
        e.I('s_add_u32 s55, s55, 24')
        e.I('v_min_u32 v253, s55, v253')
        e.I('v_lshl_add_u32 v252, v253, 7, v252')
        e.I(f's_mul_i32 s43, s40, {8*3584}')
        e.I('buffer_load_dword v254, v252, s[16:19], s43 offen')

    fixups = []
    def maxtree(Sc):
        r = [f'v_max3_f32 v{vmx}, v{Sc}, v{Sc+1}, v{Sc+2}']
        for q in range(3, 31, 2): r.append(f'v_max3_f32 v{vmx}, v{vmx}, v{Sc+q}, v{Sc+q+1}')
        r.append(f'v_max_f32 v{vmx}, v{vmx}, v{Sc+31}')
        return r
    def t_stage(k, n):
        sl = SLOT(k)
        M = []
        V = []
        if n < 8:
            for kq in range(8): p.I(f'v_add_u32 v{CUR+kq}, {sl}, v{vK+kq}')
        if n > 0:
            for t in range(4): p.I(f'v_add_u32 v{CUR+8+t}, {sl}, v{vV+t}')
        req_pv = [0]*4
        f = 0
        if n < 8:
            Sn = S[n % 2]
            for a in range(2):
                for kq in range(8):
                    stg = STG + 4*(f % 8)
                    cc = ('0' if n == 0 else vr(NM, 16)) if kq == 0 else vr(Sn+16*a, 16)
                    M.append([[f'ds_read_b128 {vr(stg,4)}, v{CUR+kq} offset:{a*8192}'],
                              f'{MFMA} {vr(Sn+16*a,16)}, {vr(stg,4)}, {vr(QB+4*kq,4)}, {cc}', -1])
                    f += 1
        if n > 0:
            Sc = S[(n - 1) % 2]
            for jj in range(4):
                for t in range(4):
                    stg = STG + 4*(f % 8)
                    cc = '0' if (n == 1 and jj == 0) else vr(ACC+16*t, 16)
                    M.append([[f'ds_read_b64_tr_b16 {vr(stg,2)}, v{CUR+8+t} offset:{16384+jj*4096}',
                               f'ds_read_b64_tr_b16 {vr(stg+2,2)}, v{CUR+8+t} offset:{16384+jj*4096+1024}'],
                              f'{MFMA} {vr(ACC+16*t,16)}, {vr(stg,4)}, {vr(Sc+8*jj,4)}, {cc}', jj])
                    f += 1
        D = 6
        for j in range(min(D, len(M))):
            for r in M[j][0]: p.I(r)
        e = Cap()
        if n == 2:
            e0 = Cap(); warm(e0, 'wo'); extra(e, e0)
        if n == 4:
            e0 = Cap()
            e0.I('v_mov_b32 v254, 0')
            e0.I('buffer_load_dword v255, v254, s[96:99], 0 offen sc1')
            extra(e, e0)
        if n == 6:
            p.I('v_readfirstlane_b32 s43, v255')
            p.I('s_cmp_lt_u32 s43, 256')
            p.I('s_cbranch_scc1 L_back_w')
            p.I('s_lshl_b32 s40, s33, 3')
            p.I('s_add_u32 s40, s40, s34')
            p.I(f'v_lshlrev_b32 v253, 7, v{L}')
            p.I('s_lshl_b32 s43, s40, 13')
            p.I('buffer_load_dword v255, v253, s[8:11], s43 offen sc1')
            p.L('L_back_w:')
            e0 = Cap(); g1_warm(e0); extra(e, e0)
        track(k + 2, e)
        V += e.l
        if n > 0:
            if n == 1:
                p.I(f'v_mov_b32 v{vt}, v{vmx}')
                p.I(f'v_permlane32_swap_b32 v{vmx}, v{vt}')
                p.I(f'v_max_f32 v{vmx}, v{vmx}, v{vt}')
                for r in range(16): p.I(f'v_sub_f32 v{NM+r}, 0, v{vmx}')
                p.I(f'v_mov_b32 v{vl}, 0')
                for r in range(32): V.append(f'v_sub_f32 v{Sc+r}, v{Sc+r}, v{vmx}')
            else:
                p.I(f'v_cmp_lt_f32 vcc, s51, v{vmx}')
                p.I(f's_cbranch_vccnz L_fix{n}')
                p.L(f'L_back{n}:')
                fixups.append((n, Sc))
            for jj in range(4):
                r0 = Sc + 8*jj
                for r in range(8): V.append(f'v_exp_f32 v{r0+r}, v{r0+r}')
                for r in range(8): V.append(f'v_add_f32 v{vl}, v{vl}, v{r0+r}')
                for r in range(4): V.append(f'v_cvt_pk_bf16_f32 v{r0+r}, v{r0+2*r}, v{r0+2*r+1}')
                req_pv[jj] = len(V)
        nv0 = len(V)
        if n < 8: V += maxtree(S[n % 2])
        vpos = 0
        nm = len(M)
        for j in range(nm):
            need = req_pv[M[j][2]] if M[j][2] >= 0 else 0
            while vpos < need:
                p.I(V[vpos]); vpos += 1
            p.I(M[j][1])
            if j + D < nm:
                for r in M[j+D][0]: p.I(r)
            target = -(-(j+1) * len(V) // nm)
            if j < 17: target = min(target, nv0)
            while vpos < target:
                p.I(V[vpos]); vpos += 1
        while vpos < len(V):
            p.I(V[vpos]); vpos += 1

    for k, (kind, n) in enumerate(stages):
        p.C(f'==== stage {k}: {kind}{n}')
        top(k)
        if kind == 'Q':
            e = Cap()
            q_reads(k, n, e)
            track(k + 2, e)
            if n in LN2_ST:
                q = LN2_ST.index(n); per = -(-len(LN2) // len(LN2_ST))
                e0 = Cap(); e0.l = LN2[q*per:(q+1)*per]; extra(e, e0)
            if n > 0: merge(p, q_mfmas(n - 1), e.l)
            else:
                for t in e.l: p.I(t)
            if n == 14: w_setup()
            if n == HPUB:
                p.I('s_cmp_lg_u32 s34, 0')
                p.I('s_cbranch_scc1 L_back_h')
                p.I('v_mov_b32 v252, 0')
                p.I('v_mov_b32 v253, 1')
                p.I('s_mov_b64 exec, 1')
                p.I('buffer_atomic_add v253, v252, s[96:99], 0 offen sc1')
                p.I('s_mov_b64 exec, -1')
                p.L('L_back_h:')
        elif kind == 'T':
            if n == 0:
                for t in q_mfmas(15): p.I(t)
                w_setup2()
                for r in range(64): p.I(f'v_mul_f32 v{ACC+r}, s50, v{ACC+r}')
                for t in range(4):
                    for tp in range(2):
                        for d in range(4):
                            r = ACC + 16*t + 8*tp + 2*d
                            p.I(f'v_cvt_pk_bf16_f32 v{QB+4*(2*t+tp)+d}, v{r}, v{r+1}')
            t_stage(k, n)
            if n == 8:
                p.I(f'v_mov_b32 v{vt}, v{vl}')
                p.I(f'v_permlane32_swap_b32 v{vl}, v{vt}')
                p.I(f'v_add_f32 v{vl}, v{vl}, v{vt}')
                p.I(f'v_rcp_f32 v{vl}, v{vl}')
                p.I('s_lshl_b32 s40, s35, 14')
                p.I(f'v_add_u32 v252, s40, v{vXq}')
                for t in range(4):
                    for tp in range(2):
                        r = ACC + 16*t + 8*tp
                        o = 128 + 4*(2*t+tp)
                        for j in range(8): p.I(f'v_mul_f32 v{r+j}, v{r+j}, v{vl}')
                        for d in range(4): p.I(f'v_cvt_pk_bf16_f32 v{o+d}, v{r+2*d}, v{r+2*d+1}')
                        p.I(f'v_xor_b32 v{CUR+2*t+tp}, {(4*(t%2)+2*tp)*16}, v252')
                        p.I(f'ds_write_b128 v{CUR+2*t+tp}, {vr(o,4)} offset:{(t//2)*8192}')
        else:
            e = Cap()
            w_reads(k, n, e)
            track(k + 2, e)
            if n > 0: merge(p, w_mfmas(n - 1), e.l)
            else:
                for t in e.l: p.I(t)
    for t in w_mfmas(15): p.I(t)
    p.I('s_lshl_b32 s40, s32, 21')
    p.I('s_lshl_b32 s43, s33, 16')
    p.I('s_add_u32 s40, s40, s43')
    p.I('s_add_u32 s40, s40, s41')
    p.I('s_add_u32 s43, s40, 32768')
    for ta in range(2):
        for tb in range(2):
            for tp in range(2):
                r = ACC + 16*(2*ta+tb) + 8*tp
                o = 128 + 4*(4*ta+2*tb+tp)
                for d in range(4): p.I(f'v_cvt_pk_bf16_f32 v{o+d}, v{r+2*d}, v{r+2*d+1}')
                p.I(f'buffer_store_dwordx4 {vr(o,4)}, v{vL16}, s[28:31], s{43 if tb else 40} offen offset:{(4*ta+2*tp)*512}{PART_SC}')
    if st: stamp_tail(p, 41)
    p.I('s_endpgm')
    for n, Sc in fixups:
        p.L(f'L_fix{n}:')
        p.I('s_nop 15')
        p.I(f'v_mov_b32 v{vt}, v{vmx}')
        p.I(f'v_permlane32_swap_b32 v{vmx}, v{vt}')
        p.I(f'v_max3_f32 v{vmx}, v{vmx}, v{vt}, 0')
        p.I(f'v_sub_f32 v{va}, 0, v{vmx}')
        p.I(f'v_exp_f32 v{va}, v{va}')
        for r in range(32): p.I(f'v_sub_f32 v{Sc+r}, v{Sc+r}, v{vmx}')
        for r in range(16): p.I(f'v_sub_f32 v{NM+r}, v{NM+r}, v{vmx}')
        p.I(f'v_mul_f32 v{vl}, v{vl}, v{va}')
        for r in range(64): p.I(f'v_mul_f32 v{ACC+r}, v{ACC+r}, v{va}')
        p.I('s_nop 3')
        p.I(f's_branch L_back{n}')

    p.L('L_gemm1:')
    p.I('s_sub_u32 s3, s2, 256')
    p.I('s_cmp_ge_u32 s3, 224')
    p.I('s_cbranch_scc1 L_main_done')
    p.I('s_and_b32 s40, s3, 7')
    p.I('s_lshr_b32 s41, s3, 3')
    p.I('s_and_b32 s32, s41, 7')
    p.I('s_and_b32 s33, s41, 24')
    p.I('s_add_u32 s33, s33, s40')
    p.I('s_lshr_b32 s42, s40, 1')
    p.I('s_add_u32 s42, s42, 24')
    p.I('s_and_b32 s43, s40, 1')
    p.I('s_lshl_b32 s43, s43, 2')
    p.I('s_add_u32 s43, s43, s32')
    p.I('s_cmp_ge_u32 s41, 24')
    p.I('s_cselect_b32 s33, s42, s33')
    p.I('s_cselect_b32 s32, s43, s32')
    p.I('s_load_dwordx4 s[4:7], s[0:1], 48')
    p.I('s_load_dwordx2 s[50:51], s[0:1], 64')
    p.I('s_load_dwordx4 s[92:95], s[0:1], 88')
    lane_setup(p)
    p.I('s_waitcnt lgkmcnt(0)')
    p.I('s_mov_b32 s48, s94')
    p.I('s_mov_b32 s49, s95')
    srd(p, 96, 92, 93, 256)
    srd(p, 8, 4, 5, 2048*1792*2)
    srd(p, 12, 48, 49, 2 << 20, WS_H)
    srd(p, 16, 6, 7, 1792*2)
    srd(p, 20, 48, 49, U_BYTES, WS_U)
    srd(p, 24, 50, 51, 1792*2048*2)
    p.I(f's_mul_i32 s44, s34, {16*3584}')
    p.I('s_lshl_b32 s40, s33, 7')
    p.I('s_add_u32 s44, s44, s40')
    p.I('s_lshl_b32 s45, s34, 14')
    p.I('s_lshl_b32 s40, s32, 7')
    p.I('s_add_u32 s45, s45, s40')
    def g1_hooks(e, n):
        if n == -1:
            e.I('s_lshl_b32 s40, s33, 7')
            e.I('s_lshl_b32 s41, s35, 6')
            e.I('s_add_u32 s40, s40, s41')
            e.I('s_lshl_b32 s41, s37, 5')
            e.I('s_add_u32 s46, s40, s41')
            e.I('v_lshrrev_b32 v252, 5, v1')
            e.I('v_lshlrev_b32 v20, 4, v252')
            e.I('buffer_load_dwordx4 v[16:19], v20, s[16:19], s46 offen')
        if n == 15:
            e.I('s_lshr_b32 s42, s3, 3')
            e.I('s_lshl_b32 s42, s42, 3')
            e.I('s_add_u32 s42, s42, s34')
            e.I('s_lshl_b32 s42, s42, 15')
            e.I('s_and_b32 s43, s3, 3')
            e.I('s_lshl_b32 s43, s43, 10')
            e.I('s_add_u32 s42, s42, s43')
            e.I('v_lshrrev_b32 v252, 3, v1')
            e.I('v_and_b32 v253, 7, v1')
            e.I('v_lshlrev_b32 v253, 7, v253')
            e.I('v_lshl_add_u32 v252, v252, 12, v253')
            e.I('buffer_load_dword v22, v252, s[24:27], s42 offen')
    def g1_gate(ph):
        if ph == 0:
            p.I('v_mov_b32 v24, 0')
            p.I('buffer_load_dword v25, v24, s[96:99], 0 offen sc1')
        else:
            p.I('s_waitcnt vmcnt(8)')
            p.L('L_g1_poll:')
            p.I('v_readfirstlane_b32 s40, v25')
            p.I('s_cmp_ge_u32 s40, 256')
            p.I('s_cbranch_scc1 L_g1_go')
            p.I('s_sleep 8')
            p.I('buffer_load_dword v25, v24, s[96:99], 0 offen sc1')
            p.I('s_waitcnt vmcnt(0)')
            p.I('s_branch L_g1_poll')
            p.L('L_g1_go:')
    gemm64(p, 'g1', 16, 'tr', 8, 12, 3584, 1024, 44, 45, 128*3584, 128*1024, g1_hooks, g1_gate, ' sc1')
    p.I('s_mov_b32 s40, 0xffff0000')
    k0 = math.sqrt(2.0/math.pi)
    p.I(f's_mov_b32 s41, {f32hex(-2.0*k0*LOG2E)}')
    p.I(f's_mov_b32 s42, {f32hex(-2.0*k0*LOG2E*0.044715)}')
    for i in range(4):
        p.I(f'v_lshlrev_b32 v{72+2*i}, 16, v{16+i}')
        p.I(f'v_and_b32 v{72+2*i+1}, s40, v{16+i}')
    for j in range(8): p.I(f'v_add_f32 v{64+j}, v{64+j}, v{72+j}')
    for j in range(8): p.I(f'v_mul_f32 v{72+j}, v{64+j}, v{64+j}')
    p.I('v_mov_b32 v21, s41')
    for j in range(8): p.I(f'v_fma_f32 v{72+j}, v{72+j}, s42, v21')
    for j in range(8): p.I(f'v_mul_f32 v{72+j}, v{72+j}, v{64+j}')
    for j in range(8): p.I(f'v_exp_f32 v{72+j}, v{72+j}')
    for j in range(8): p.I(f'v_add_f32 v{72+j}, 1.0, v{72+j}')
    for j in range(8): p.I(f'v_rcp_f32 v{72+j}, v{72+j}')
    for j in range(8): p.I(f'v_mul_f32 v{64+j}, v{64+j}, v{72+j}')
    for d in range(4): p.I(f'v_cvt_pk_bf16_f32 v{80+d}, v{64+2*d}, v{64+2*d+1}')
    p.I('v_and_b32 v252, 31, v1')
    p.I('s_lshl_b32 s40, s32, 6')
    p.I('s_lshl_b32 s41, s36, 5')
    p.I('s_add_u32 s40, s40, s41')
    p.I('v_add_u32 v252, s40, v252')
    p.I('s_mov_b32 s41, 3584')
    p.I('v_mul_lo_u32 v252, v252, s41')
    p.I('v_add_u32 v252, v252, v20')
    p.I('buffer_store_dwordx4 v[80:83], v252, s[20:23], s46 offen')
    if STAMPS and STAG in ('g1', 'both'): stamp_tail(p, 16)
    p.L('L_main_done:')
    p.I('s_endpgm')
    return p.finalize()

def gen_final():
    p = Prog()
    p.I('s_cmp_ge_u32 s2, 256')
    p.I('s_cbranch_scc1 L_fin_done')
    p.I('s_lshr_b32 s3, s2, 3')
    p.I('s_bfe_u32 s32, s2, 0x10002')
    p.I('s_lshl_b32 s32, s32, 2')
    p.I('s_lshr_b32 s33, s3, 3')
    p.I('s_add_u32 s32, s32, s33')
    p.I('s_and_b32 s33, s2, 3')
    p.I('s_lshl_b32 s33, s33, 3')
    p.I('s_and_b32 s40, s3, 7')
    p.I('s_add_u32 s33, s33, s40')
    p.I('s_load_dwordx2 s[4:5], s[0:1], 0')
    p.I('s_load_dwordx4 s[44:47], s[0:1], 64')
    p.I('s_load_dwordx2 s[6:7], s[0:1], 80')
    p.I('s_load_dwordx2 s[48:49], s[0:1], 96')
    lane_setup(p)
    p.I('s_waitcnt lgkmcnt(0)')
    srd(p, 8, 48, 49, U_BYTES, WS_U)
    srd(p, 12, 44, 45, 1792*2048*2)
    srd(p, 16, 46, 47, 2048*2)
    srd(p, 20, 4, 5, 2 << 20)
    srd(p, 24, 6, 7, 2 << 20)
    srd(p, 28, 48, 49, 16 << 20, WS_PART)
    p.I('s_lshl_b32 s40, s32, 6')
    p.I('s_lshl_b32 s41, s34, 3')
    p.I('s_add_u32 s40, s40, s41')
    p.I('s_mul_i32 s52, s40, 3584')
    p.I('s_lshl_b32 s53, s34, 16')
    p.I('s_lshl_b32 s40, s33, 7')
    p.I('s_add_u32 s53, s53, s40')
    def fin_hooks(e, n):
        if n == -1:
            e.I('s_bfe_u32 s40, s2, 0x10002')
            e.I('s_lshl_b32 s40, s40, 8')
            e.I('s_lshl_b32 s41, s3, 3')
            e.I('s_add_u32 s40, s40, s41')
            e.I('s_add_u32 s40, s40, s34')
            e.I('s_mul_i32 s40, s40, 3584')
            e.I('v_min_u32 v252, 27, v1')
            e.I('v_lshlrev_b32 v252, 7, v252')
            e.I('buffer_load_dword v23, v252, s[8:11], s40 offen')
            e.I('v_and_b32 v252, 31, v1')
            e.I('s_lshl_b32 s40, s33, 6')
            e.I('s_lshl_b32 s41, s36, 5')
            e.I('s_add_u32 s55, s40, s41')
            e.I('v_add_u32 v253, s55, v252')
            e.I('v_lshlrev_b32 v24, 1, v253')
            e.I('s_lshl_b32 s41, s32, 7')
            e.I('s_lshl_b32 s42, s35, 6')
            e.I('s_add_u32 s41, s41, s42')
            e.I('s_lshl_b32 s42, s37, 5')
            e.I('s_add_u32 s54, s41, s42')
            e.I('v_lshrrev_b32 v254, 5, v1')
            e.I('v_lshlrev_b32 v254, 4, v254')
            e.I('v_lshl_add_u32 v21, v253, 10, v254')
            e.I('s_lshl_b32 s55, s55, 10')
            e.I('s_lshl_b32 s41, s54, 5')
            e.I('s_add_u32 s55, s55, s41')
            e.I('v_lshlrev_b32 v25, 4, v1')
        if 2 <= n < 10:
            g = n - 2
            e.I(f's_add_u32 s42, s55, {g << 21}')
            e.I(f'buffer_load_dwordx4 {vr(96+4*g,4)}, v25, s[28:31], s42 offen')
        if n == 1:
            e.I('buffer_load_ushort v20, v24, s[16:19], 0 offen')
            e.I('buffer_load_dwordx4 v[16:19], v21, s[20:23], s54 offen')
    gemm64(p, 'g2', 14, 'row', 8, 12, 3584, 4096, 52, 53, 256, 128*4096, fin_hooks)
    p.I('s_mov_b32 s40, 0xffff0000')
    p.I(f's_mov_b32 s41, {f32hex(-LOG2E)}')
    p.I('v_lshlrev_b32 v20, 16, v20')
    for j in range(8): p.I(f'v_add_f32 v{64+j}, v{64+j}, v20')
    for j in range(8): p.I(f'v_mul_f32 v{72+j}, s41, v{64+j}')
    for j in range(8): p.I(f'v_exp_f32 v{72+j}, v{72+j}')
    for j in range(8): p.I(f'v_add_f32 v{72+j}, 1.0, v{72+j}')
    for j in range(8): p.I(f'v_rcp_f32 v{72+j}, v{72+j}')
    for j in range(8): p.I(f'v_mul_f32 v{64+j}, v{64+j}, v{72+j}')
    for g in range(8):
        for i in range(4):
            if g == 0:
                p.I(f'v_lshlrev_b32 v{72+2*i}, 16, v{96+i}')
                p.I(f'v_and_b32 v{72+2*i+1}, s40, v{96+i}')
            else:
                p.I(f'v_lshlrev_b32 v{80+2*i}, 16, v{96+4*g+i}')
                p.I(f'v_and_b32 v{80+2*i+1}, s40, v{96+4*g+i}')
        if g:
            for j in range(8): p.I(f'v_add_f32 v{72+j}, v{72+j}, v{80+j}')
    for i in range(4):
        p.I(f'v_lshlrev_b32 v{80+2*i}, 16, v{16+i}')
        p.I(f'v_and_b32 v{80+2*i+1}, s40, v{16+i}')
    for j in range(8): p.I(f'v_fma_f32 v{80+j}, v{72+j}, v{64+j}, v{80+j}')
    for d in range(4): p.I(f'v_cvt_pk_bf16_f32 v{88+d}, v{80+2*d}, v{80+2*d+1}')
    p.I('buffer_store_dwordx4 v[88:91], v21, s[24:27], s54 offen')
    if STAMPS and STAG == 'g2': stamp_tail(p, 14)
    p.L('L_fin_done:')
    p.I('s_endpgm')
    return p.finalize()

def kd(name, vgpr, sgpr=102):
    return f""".p2align 6
.amdhsa_kernel {name}
  .amdhsa_next_free_vgpr {vgpr}
  .amdhsa_next_free_sgpr {sgpr}
  .amdhsa_accum_offset {vgpr}
  .amdhsa_group_segment_fixed_size 0
  .amdhsa_kernarg_size 104
  .amdhsa_user_sgpr_count 2
  .amdhsa_user_sgpr_kernarg_segment_ptr 1
  .amdhsa_system_sgpr_workgroup_id_x 1
.end_amdhsa_kernel
"""

def main(path):
    hdr = open('recurrent_scan__sliding_block_cached__mixer_token_mlp__prompt.s.ref').read().split('; Override launch')[0]
    out = [hdr.rstrip('\n')]
    out.append('; @launch kernel=main_kernel grid=(480,1,1) block=(512,1,1) lds=163840')
    out.append('; @launch kernel=final_kernel grid=(256,1,1) block=(512,1,1) lds=163840')
    out.append('.amdgcn_target "amdgcn-amd-amdhsa--gfx950"\n.text')
    for name, body in (('main_kernel', gen_main()), ('final_kernel', gen_final())):
        out.append(f'.globl {name}\n.p2align 8\n.type {name},@function\n{name}:')
        out.append(body)
    out.append('.section .rodata,"a"')
    out.append(kd('main_kernel', 256, 102))
    out.append(kd('final_kernel', 256, 80))
    open(path, 'w').write('\n'.join(out))

if __name__ == '__main__':
    main(sys.argv[1] if len(sys.argv) > 1 else 'recurrent_scan__sliding_block_cached__mixer_token_mlp__prompt.s')
```

```python
import sys, math, os, struct
sys.path.insert(0, 'gen')
from asmgen import Prog

WS_XN = 0
WS_H = 2 << 20
WS_U = 4 << 20
WS_PART = 8 << 20
WS_S = 6 << 20
WS_KF = 24 << 20
WS_VF = 25 << 20
U_BYTES = 512 * 1792 * 2

LOG2E = 1.4426950408889634
G1W = int(os.environ.get('G1W', '4'))
PART_SC = os.environ.get('PART_SC', ' sc1')
STAG = os.environ.get('STAG', 'main')
STAMPS = bool(int(os.environ.get('STAMPS', '0')))
def f32hex(x):
    return '0x%08x' % struct.unpack('<I', struct.pack('<f', x))[0]

def vr(a, n=1):
    return f'v{a}' if n == 1 else f'v[{a}:{a+n-1}]'

def srd(p, d, lo, hi, nbytes, add=0):
    if add:
        p.I(f's_add_u32 s{d}, s{lo}, {add}')
        p.I(f's_addc_u32 s{d+1}, s{hi}, 0')
        p.I(f's_and_b32 s{d+1}, s{d+1}, 0xffff')
    else:
        p.I(f's_mov_b32 s{d}, s{lo}')
        p.I(f's_and_b32 s{d+1}, s{hi}, 0xffff')
    p.I(f's_mov_b32 s{d+2}, {nbytes}')
    p.I(f's_mov_b32 s{d+3}, 0x20000')

def allreduce(p, op, v, t):
    p.I(f'{op}_dpp v{v}, v{v}, v{v} quad_perm:[1,0,3,2] row_mask:0xf bank_mask:0xf')
    p.I(f'{op}_dpp v{v}, v{v}, v{v} quad_perm:[2,3,0,1] row_mask:0xf bank_mask:0xf')
    p.I(f'{op}_dpp v{v}, v{v}, v{v} row_half_mirror row_mask:0xf bank_mask:0xf')
    p.I(f'{op}_dpp v{v}, v{v}, v{v} row_mirror row_mask:0xf bank_mask:0xf')
    p.I(f'v_mov_b32 v{t}, v{v}')
    p.I(f'v_permlane16_swap_b32 v{v}, v{t}')
    p.I(f'{op} v{v}, v{v}, v{t}')
    p.I(f'v_mov_b32 v{t}, v{v}')
    p.I(f'v_permlane32_swap_b32 v{v}, v{t}')
    p.I(f'{op} v{v}, v{v}, v{t}')

def lane_setup(p, lane=1):
    p.I(f'v_and_b32 v{lane}, 63, v0')
    p.I('v_lshrrev_b32 v252, 6, v0')
    p.I('v_readfirstlane_b32 s34, v252')

def tr_lane_bits(p, lane, rowbytes, pi, dst_row, dst_col, t1):
    sh = int(math.log2(rowbytes))
    p.I(f'v_lshrrev_b32 v{dst_row}, 5, v{lane}')
    p.I(f'v_lshlrev_b32 v{dst_row}, 3, v{dst_row}')
    p.I(f'v_bfe_u32 v{t1}, v{lane}, 2, 2')
    p.I(f'v_add_u32 v{dst_row}, v{dst_row}, v{t1}')
    p.I(f'v_lshlrev_b32 v{dst_row}, {sh}, v{dst_row}')
    p.I(f'v_bfe_u32 v{dst_col}, v{lane}, 4, 1')
    p.I(f'v_lshlrev_b32 v{dst_col}, 5, v{dst_col}')
    if pi:
        p.I(f'v_and_b32 v{t1}, 1, v{lane}')
        p.I(f'v_lshl_add_u32 v{dst_col}, v{t1}, 4, v{dst_col}')
        p.I(f'v_bfe_u32 v{t1}, v{lane}, 1, 1')
        p.I(f'v_lshl_add_u32 v{dst_col}, v{t1}, 3, v{dst_col}')
    else:
        p.I(f'v_and_b32 v{t1}, 3, v{lane}')
        p.I(f'v_lshl_add_u32 v{dst_col}, v{t1}, 3, v{dst_col}')

def pi_row(p, src, dst, t1):
    p.I(f'v_and_b32 v{dst}, 19, v{src}')
    p.I(f'v_bfe_u32 v{t1}, v{src}, 2, 1')
    p.I(f'v_lshl_add_u32 v{dst}, v{t1}, 3, v{dst}')
    p.I(f'v_bfe_u32 v{t1}, v{src}, 3, 1')
    p.I(f'v_lshl_add_u32 v{dst}, v{t1}, 2, v{dst}')

MFMA = 'v_mfma_f32_32x32x16_bf16'

class Cap:
    def __init__(self): self.l = []
    def I(self, t): self.l.append(t)

def nvm(lst):
    return sum(1 for t in lst if t.startswith('buffer_'))

def merge(p, mf, fill):
    pos = 0
    n = len(mf)
    for j, m in enumerate(mf):
        p.I(m)
        tgt = -(-(j + 1) * len(fill) // n)
        while pos < tgt:
            p.I(fill[pos]); pos += 1

def stamp_tail(p, n, wsl=48):
    p.I('s_waitcnt lgkmcnt(0)')
    p.I(f'v_writelane_b32 v0, s60, {n}')
    p.I('s_memtime s[60:61]')
    p.I('s_waitcnt vmcnt(0) lgkmcnt(0)')
    p.I(f'v_writelane_b32 v0, s60, {n+1}')
    p.I('v_writelane_b32 v0, s62, 60')
    p.I('s_memrealtime s[62:63]')
    p.I('s_waitcnt vmcnt(0) lgkmcnt(0)')
    p.I('v_writelane_b32 v0, s62, 61')
    srd(p, 64, wsl, wsl+1, 1 << 20, 64 << 20)
    p.I('s_lshl_b32 s40, s2, 11')
    p.I('s_lshl_b32 s43, s34, 8')
    p.I('s_add_u32 s40, s40, s43')
    p.I('v_lshlrev_b32 v252, 2, v1')
    p.I('buffer_store_dword v0, v252, s[64:67], s40 offen')

def gen_prep():
    p = Prog()
    p.I('s_cmp_ge_u32 s2, 832')
    p.I('s_cbranch_scc1 L_ln_done')
    p.I('s_cmp_ge_u32 s2, 576')
    p.I('s_cbranch_scc1 L_vf')
    p.I('s_cmp_ge_u32 s2, 512')
    p.I('s_cbranch_scc1 L_kf')
    p.I('s_load_dwordx2 s[4:5], s[0:1], 0')
    p.I('s_load_dwordx2 s[6:7], s[0:1], 96')
    p.I('s_load_dwordx4 s[20:23], s[0:1], 24')
    p.I('v_lshrrev_b32 v1, 6, v0')
    p.I('v_and_b32 v2, 63, v0')
    p.I('v_readfirstlane_b32 s34, v1')
    p.I('s_lshl_b32 s3, s2, 2')
    p.I('v_add_u32 v1, s3, v1')
    p.I('v_lshlrev_b32 v1, 10, v1')
    p.I('v_lshl_add_u32 v1, v2, 4, v1')
    p.I('s_waitcnt lgkmcnt(0)')
    srd(p, 8, 4, 5, 2 << 20)
    srd(p, 12, 6, 7, 4 << 20)
    p.I('buffer_load_dwordx4 v[8:11], v1, s[8:11], 0 offen')
    srd(p, 24, 20, 21, 4 << 20)
    srd(p, 28, 22, 23, 4 << 20)
    p.I('s_and_b32 s32, s2, 7')
    p.I('s_lshr_b32 s33, s2, 3')
    p.I('s_lshl_b32 s33, s33, 2')
    p.I('s_add_u32 s33, s33, s34')
    p.I('v_and_b32 v4, 15, v2')
    p.I('v_lshrrev_b32 v5, 3, v4')
    p.I('v_and_b32 v6, 7, v4')
    p.I('v_lshlrev_b32 v6, 7, v6')
    p.I('v_lshl_add_u32 v5, v5, 13, v6')
    p.I('s_lshl_b32 s35, s33, 14')
    p.I('s_lshl_b32 s36, s32, 10')
    p.I('s_add_u32 s35, s35, s36')
    p.I('buffer_load_dword v44, v5, s[24:27], s35 offen')
    p.I('v_lshlrev_b32 v5, 7, v4')
    p.I('s_lshl_b32 s35, s33, 11')
    p.I('s_lshl_b32 s36, s32, 19')
    p.I('s_add_u32 s35, s35, s36')
    p.I('buffer_load_dword v45, v5, s[28:31], s35 offen')
    p.I('s_mov_b32 s16, 0xffff0000')
    p.I(f's_mov_b32 s17, {f32hex(1.0/512)}')
    p.I(f's_mov_b32 s18, {f32hex(1e-5)}')
    E = 16
    def unpack(src):
        for i in range(4):
            p.I(f'v_lshlrev_b32 v{E+2*i}, 16, v{src+i}')
            p.I(f'v_and_b32 v{E+2*i+1}, s16, v{src+i}')
    def rb(v):
        p.I(f'v_cvt_pk_bf16_f32 v{v}, v{v}, v{v}')
        p.I(f'v_lshlrev_b32 v{v}, 16, v{v}')
    def ln(dst):
        p.I(f'v_add_f32 v3, v{E}, v{E+1}')
        for i in range(2, 8): p.I(f'v_add_f32 v3, v3, v{E+i}')
        allreduce(p, 'v_add_f32', 3, 4)
        p.I('v_mul_f32 v3, s17, v3')
        for i in range(8): p.I(f'v_sub_f32 v{24+i}, v{E+i}, v3')
        p.I('v_mul_f32 v5, v24, v24')
        for i in range(1, 8): p.I(f'v_fmac_f32 v5, v{24+i}, v{24+i}')
        allreduce(p, 'v_add_f32', 5, 4)
        p.I('v_mul_f32 v5, s17, v5')
        rb(3); rb(5)
        p.I('v_add_f32 v5, s18, v5'); rb(5)
        p.I('v_sqrt_f32 v5, v5'); rb(5)
        p.I('v_rcp_f32 v5, v5')
        for i in range(8): p.I(f'v_sub_f32 v{24+i}, v{E+i}, v3')
        for i in range(4): p.I(f'v_cvt_pk_bf16_f32 v{32+i}, v{24+2*i}, v{24+2*i+1}')
        for i in range(4):
            p.I(f'v_lshlrev_b32 v{24+2*i}, 16, v{32+i}')
            p.I(f'v_and_b32 v{24+2*i+1}, s16, v{32+i}')
        for i in range(8): p.I(f'v_mul_f32 v{24+i}, v{24+i}, v5')
        for i in range(4): p.I(f'v_cvt_pk_bf16_f32 v{dst+i}, v{24+2*i}, v{24+2*i+1}')
    unpack(8)
    ln(36)
    p.I('buffer_store_dwordx4 v[36:39], v1, s[12:15], 0 offen')
    unpack(36)
    ln(40)
    p.I(f's_mov_b32 s19, {WS_H}')
    p.I('buffer_store_dwordx4 v[40:43], v1, s[12:15], s19 offen')
    p.I('s_endpgm')
    p.L('L_kf:')
    p.I('s_load_dwordx2 s[4:5], s[0:1], 8')
    p.I('s_load_dwordx2 s[6:7], s[0:1], 96')
    p.I('s_sub_u32 s3, s2, 512')
    p.I('s_and_b32 s32, s3, 7')
    p.I('s_lshr_b32 s33, s3, 3')
    p.I('v_lshrrev_b32 v1, 4, v0')
    p.I('v_and_b32 v2, 15, v0')
    p.I('s_waitcnt lgkmcnt(0)')
    srd(p, 8, 4, 5, 4 << 20)
    srd(p, 12, 6, 7, 1 << 20, WS_KF)
    p.I('s_lshl_b32 s35, s32, 19')
    p.I('s_lshl_b32 s36, s33, 14')
    p.I('s_add_u32 s35, s35, s36')
    p.I(f's_add_u32 s35, s35, {1536*256}')
    p.I('v_lshlrev_b32 v3, 4, v0')
    for it in range(4):
        p.I(f'buffer_load_dwordx4 v[{8+4*it}:{11+4*it}], v3, s[8:11], s35 offen offset:{0}' if it == 0 else
            f'buffer_load_dwordx4 v[{8+4*it}:{11+4*it}], v{31+it}, s[8:11], s35 offen')
        if it < 3: p.I(f'v_add_u32 v{32+it}, {4096*(it+1)}, v3')
    p.I('s_lshl_b32 s35, s32, 17')
    p.I('s_add_u32 s35, s35, s36')
    p.I('v_lshrrev_b32 v4, 1, v2')
    p.I('v_and_b32 v5, 1, v2')
    p.I('v_lshlrev_b32 v4, 10, v4')
    p.I('v_lshl_add_u32 v4, v5, 9, v4')
    for it in range(4):
        p.I(f'v_add_u32 v6, {16*(it%2)}, v1')
        pi_row(p, 6, 7, 24)
        p.I('v_lshl_add_u32 v7, v7, 4, v4')
        p.I(f'v_add_u32 v{40+it}, {8192*(it//2)}, v7')
        p.I(f'buffer_store_dwordx4 v[{8+4*it}:{11+4*it}], v{40+it}, s[12:15], s35 offen')
    p.I('s_endpgm')
    p.L('L_vf:')
    p.I('s_load_dwordx2 s[4:5], s[0:1], 16')
    p.I('s_load_dwordx2 s[6:7], s[0:1], 96')
    p.I('s_sub_u32 s3, s2, 576')
    p.I('s_and_b32 s32, s3, 7')
    p.I('s_lshr_b32 s33, s3, 3')
    p.I('v_and_b32 v1, 63, v0')
    p.I('v_lshrrev_b32 v2, 6, v0')
    pi_row(p, 1, 3, 4)
    p.I('v_lshl_add_u32 v3, v2, 5, v3')
    p.I('v_lshlrev_b32 v3, 1, v3')
    p.I('v_lshrrev_b32 v4, 5, v1')
    p.I('v_lshl_add_u32 v3, v4, 11, v3')
    p.I('s_waitcnt lgkmcnt(0)')
    srd(p, 8, 4, 5, 4 << 20)
    srd(p, 12, 6, 7, 1 << 20, WS_VF)
    p.I('s_lshl_b32 s35, s32, 19')
    p.I('s_lshl_b32 s36, s33, 12')
    p.I('s_add_u32 s35, s35, s36')
    p.I(f's_add_u32 s35, s35, {1536*256}')
    for j in range(8):
        p.I(f'buffer_load_ushort v{16+j}, v3, s[8:11], s35 offen offset:{256*j}')
    p.I('s_lshl_b32 s35, s32, 17')
    p.I('s_add_u32 s35, s35, s36')
    p.I('v_lshlrev_b32 v5, 4, v0')
    for j in range(4):
        p.I(f'v_lshl_or_b32 v{8+j}, v{17+2*j}, 16, v{16+2*j}')
    p.I('buffer_store_dwordx4 v[8:11], v5, s[12:15], s35 offen')
    p.L('L_ln_done:')
    p.I('s_endpgm')
    return p.finalize()

def gemm64(p, tag, nst, a_kind, sA, sB, a_stride, b_stride, s_aoff, s_boff, a_step, b_step, hooks, gate=None, bflag=''):
    NS = 5
    L = 1
    ACC = 64
    st = STAMPS and (tag == STAG or (STAG == 'both' and tag == 'g1'))
    p.I('s_lshr_b32 s37, s34, 2')
    p.I('s_bfe_u32 s35, s34, 0x10001')
    p.I('s_and_b32 s36, s34, 1')
    def dma128(dst0, stride):
        p.I(f'v_lshrrev_b32 v252, 3, v{L}')
        p.I(f'v_and_b32 v253, 7, v{L}')
        p.I(f'v_bfe_u32 v254, v{L}, 4, 1')
        p.I(f'v_lshlrev_b32 v254, 2, v254')
        p.I(f'v_xor_b32 v253, v253, v254')
        p.I(f's_mov_b32 s38, {stride}')
        p.I(f'v_mul_lo_u32 v252, v252, s38')
        p.I(f'v_lshl_add_u32 v{dst0}, v253, 4, v252')
        p.I(f'v_add_u32 v{dst0+1}, {8*stride - 1024}, v{dst0}')
    dma128(2, b_stride)
    if a_kind == 'tr':
        dma128(4, a_stride)
    else:
        p.I(f'v_lshrrev_b32 v252, 4, v{L}')
        p.I('s_and_b32 s38, s34, 1')
        p.I('s_lshl_b32 s38, s38, 3')
        p.I(f'v_and_b32 v253, 15, v{L}')
        p.I(f's_mov_b32 s39, {a_stride}')
        for i in range(2):
            p.I(f'v_add_u32 v254, {4*i}, v252')
            p.I('v_add_u32 v255, s38, v254')
            p.I('v_xor_b32 v255, v253, v255')
            p.I('v_mul_lo_u32 v254, v254, s39')
            p.I(f'v_lshl_add_u32 v{4+i}, v255, 4, v254')
            if i: p.I(f'v_subrev_u32 v{4+i}, {1024*i}, v{4+i}')
    p.I('s_lshl_b32 s39, s34, 11')
    def loads(e, n, parts='ab'):
        sl = (n % NS) * 32768
        if 'a' in parts:
            e.I(f's_add_u32 m0, s39, {sl}')
            e.I(f's_add_u32 s40, s{s_aoff}, {n*a_step}')
            e.I(f'buffer_load_dwordx4 v4, s[{sA}:{sA+3}], s40 offen lds')
            e.I(f'buffer_load_dwordx4 v5, s[{sA}:{sA+3}], s40 offen offset:1024 lds')
        if 'b' in parts:
            e.I(f's_add_u32 m0, s39, {sl+16384}')
            e.I(f's_add_u32 s41, s{s_boff}, {n*b_step}')
            e.I(f'buffer_load_dwordx4 v2, s[{sB}:{sB+3}], s41 offen{bflag} lds')
            e.I(f'buffer_load_dwordx4 v3, s[{sB}:{sB+3}], s41 offen offset:1024{bflag} lds')
    if st:
        p.I('s_memtime s[60:61]')
        p.I('s_memrealtime s[62:63]')
    issued = 0; last = {}
    if gate is None:
        for n in range(NS - 1):
            loads(p, n); issued += 4; last[n] = issued
    else:
        gate(0)
        for n in range(NS - 1): loads(p, n, 'a')
        gate(1)
        for n in range(NS - 1):
            loads(p, n, 'b'); issued += 2; last[n] = issued
    e = Cap(); hooks(e, -1)
    for t in e.l: p.I(t)
    issued += nvm(e.l)
    tr_lane_bits(p, L, 128, False, 252, 253, 254)
    p.I('s_lshl_b32 s38, s36, 6')
    p.I('v_add_u32 v253, s38, v253')
    p.I(f'v_bfe_u32 v254, v{L}, 3, 1')
    p.I('v_lshlrev_b32 v254, 6, v254')
    p.I('v_xor_b32 v253, v253, v254')
    p.I('v_add_u32 v6, v252, v253')
    p.I('s_lshl_b32 s38, s37, 13')
    p.I('v_add_u32 v6, s38, v6')
    if a_kind == 'tr':
        tr_lane_bits(p, L, 128, True, 252, 253, 254)
        p.I('s_lshl_b32 s42, s35, 6')
        p.I('v_add_u32 v253, s42, v253')
        p.I(f'v_bfe_u32 v254, v{L}, 3, 1')
        p.I('v_lshlrev_b32 v254, 6, v254')
        p.I('v_xor_b32 v253, v253, v254')
        p.I('v_add_u32 v7, v252, v253')
        p.I('v_add_u32 v7, s38, v7')
        nA = 1
    else:
        pi_row(p, L, 252, 253)
        p.I('s_lshl_b32 s42, s35, 5')
        p.I('v_add_u32 v252, s42, v252')
        p.I('v_and_b32 v253, 15, v252')
        p.I(f'v_lshrrev_b32 v254, 5, v{L}')
        p.I('v_xor_b32 v253, v253, v254')
        p.I('s_lshl_b32 s42, s37, 3')
        p.I('v_xor_b32 v253, s42, v253')
        p.I('v_lshlrev_b32 v253, 4, v253')
        p.I('v_lshl_add_u32 v252, v252, 8, v253')
        for kq in range(4):
            p.I(f'v_xor_b32 v{7+kq}, {32*kq}, v252')
        nA = 4
    BUF = [128, 160]
    def mfmas(n):
        b = BUF[n % 2]
        r = []
        for kq in range(4):
            c = '0' if (n == 0 and kq == 0) else vr(ACC, 16)
            r.append(f'{MFMA} {vr(ACC,16)}, {vr(b+8*kq,4)}, {vr(b+8*kq+4,4)}, {c}')
        return r
    for n in range(nst):
        sl = (n % NS) * 32768
        p.I(f's_waitcnt vmcnt({issued - last[n]}) lgkmcnt(0)')
        if st: p.I(f'v_writelane_b32 v0, s60, {n}')
        p.I('s_barrier')
        if st: p.I('s_memtime s[60:61]')
        b = BUF[n % 2]
        p.I(f'v_add_u32 v240, {sl}, v6')
        for i in range(nA): p.I(f'v_add_u32 v{241+i}, {sl}, v{7+i}')
        e = Cap()
        for kq in range(4):
            if a_kind == 'tr':
                e.I(f'ds_read_b64_tr_b16 {vr(b+8*kq,2)}, v241 offset:{kq*2048}')
                e.I(f'ds_read_b64_tr_b16 {vr(b+8*kq+2,2)}, v241 offset:{kq*2048+512}')
            else:
                e.I(f'ds_read_b128 {vr(b+8*kq,4)}, v{241+kq}')
            e.I(f'ds_read_b64_tr_b16 {vr(b+8*kq+4,2)}, v240 offset:{16384+kq*2048}')
            e.I(f'ds_read_b64_tr_b16 {vr(b+8*kq+6,2)}, v240 offset:{16384+kq*2048+512}')
        if n + NS - 1 < nst:
            loads(e, n + NS - 1); issued += 4; last[n + NS - 1] = issued
        e2 = Cap(); hooks(e2, n); issued += nvm(e2.l)
        e.l += e2.l
        if n > 0: merge(p, mfmas(n - 1), e.l)
        else:
            for t in e.l: p.I(t)
    for t in mfmas(nst - 1): p.I(t)
    eb = (nst % NS) * 32768
    p.I('s_lshl_b32 s38, s34, 12')
    p.I(f'v_lshlrev_b32 v252, 4, v{L}')
    p.I('v_add_u32 v253, s38, v252')
    p.I(f'v_add_u32 v253, {eb}, v253')
    for q in range(4):
        p.I(f'ds_write_b128 v253, {vr(ACC+4*q,4)} offset:{q*1024}')
    p.I('s_and_b32 s38, s34, 3')
    p.I('s_lshl_b32 s38, s38, 12')
    p.I('s_lshl_b32 s40, s37, 11')
    p.I('s_add_u32 s38, s38, s40')
    p.I('v_add_u32 v253, s38, v252')
    p.I(f'v_add_u32 v253, {eb}, v253')
    p.I('s_waitcnt lgkmcnt(0)')
    p.I('s_barrier')
    p.I(f'ds_read_b128 v[64:67], v253')
    p.I(f'ds_read_b128 v[68:71], v253 offset:1024')
    p.I(f'ds_read_b128 v[72:75], v253 offset:16384')
    p.I(f'ds_read_b128 v[76:79], v253 offset:17408')
    for j in range(8):
        p.I(f'v_add_f32 v{64+j}, v{64+j}, v{72+j}')

def gen_main():
    p = Prog()
    st = STAMPS and STAG in ('main', 'both')
    p.I('s_cmp_ge_u32 s2, 480')
    p.I('s_cbranch_scc1 L_main_done')
    p.I('s_cmp_ge_u32 s2, 256')
    p.I('s_cbranch_scc1 L_gemm1')
    p.I('s_load_dwordx2 s[92:93], s[0:1], 88')
    p.I('s_load_dwordx2 s[58:59], s[0:1], 0')
    p.I('s_load_dwordx4 s[68:71], s[0:1], 8')
    p.I('s_load_dwordx4 s[44:47], s[0:1], 24')
    p.I('s_load_dwordx2 s[4:5], s[0:1], 48')
    p.I('s_load_dwordx2 s[48:49], s[0:1], 96')
    L = 1
    lane_setup(p)
    p.I('s_and_b32 s32, s2, 7')
    p.I('s_lshr_b32 s33, s2, 3')
    p.I('s_waitcnt lgkmcnt(0)')
    srd(p, 8, 48, 49, 2 << 20, WS_H)
    srd(p, 12, 68, 69, 4 << 20)
    srd(p, 72, 70, 71, 4 << 20)
    srd(p, 76, 58, 59, 2 << 20)
    srd(p, 96, 92, 93, 256)
    srd(p, 16, 4, 5, 2048*1792*2)
    srd(p, 20, 44, 45, 4 << 20)
    srd(p, 24, 46, 47, 4 << 20)
    srd(p, 28, 48, 49, 16 << 20, WS_PART)
    p.I('s_lshr_b32 s35, s34, 1')
    p.I('s_and_b32 s36, s34, 1')
    c = LOG2E / math.sqrt(128.0)
    p.I(f's_mov_b32 s50, {f32hex(c)}')
    p.I(f's_mov_b32 s51, {f32hex(8.0)}')
    SLOT = lambda n: 65536 + (n % 3) * 32768
    ACC = 64; QB = 128; S = [160, 192]; NM = 224; STG = 32
    vDq = 2; vDk = 6; vDv = 8; vAq = 9; vXq = 13; vK = 14; vV = 22; vL16 = 26
    vl, va, vmx, vt = 27, 28, 30, 31
    CUR = 240
    p.I(f'v_lshlrev_b32 v{vL16}, 4, v{L}')
    XR = 32
    p.I('s_lshl_b32 s57, s33, 16')
    p.I('s_lshl_b32 s40, s34, 13')
    p.I('s_add_u32 s57, s57, s40')
    p.I(f'v_lshrrev_b32 v252, 3, v{L}')
    p.I(f'v_and_b32 v253, 7, v{L}')
    p.I('v_lshlrev_b32 v254, 4, v253')
    p.I('v_lshl_add_u32 v254, v252, 10, v254')
    for i in range(8):
        p.I(f'buffer_load_dwordx4 {vr(XR+4*i,4)}, v254, s[76:79], s57 offen offset:{128*i}')
    p.I('s_lshl_b32 s56, s34, 3')
    p.I('v_add_u32 v252, s56, v252')
    p.I('v_bfe_u32 v254, v252, 1, 3')
    p.I('v_xor_b32 v253, v253, v254')
    p.I('v_lshlrev_b32 v253, 4, v253')
    p.I('v_lshl_add_u32 v239, v252, 7, v253')
    for i in range(4):
        p.I(f'v_xor_b32 v{vDq+i}, {4*i}, v{L}')
        p.I(f'v_lshlrev_b32 v{vDq+i}, 4, v{vDq+i}')
        if i: p.I(f'v_add_u32 v{vDq+i}, {7168*i}, v{vDq+i}')
    p.I('s_lshl_b32 s39, s36, 3')
    p.I(f'v_lshrrev_b32 v252, 4, v{L}')
    p.I(f'v_and_b32 v253, 15, v{L}')
    for i in range(2):
        p.I(f's_add_u32 s40, s39, {4*i}')
        p.I('v_add_u32 v254, s40, v252')
        p.I('v_xor_b32 v254, v253, v254')
        p.I('v_lshlrev_b32 v254, 4, v254')
        p.I(f'v_lshl_add_u32 v{vDk+i}, v252, 8, v254')
    p.I('v_lshlrev_b32 v254, 2, v252')
    p.I('v_xor_b32 v254, v253, v254')
    p.I('v_lshlrev_b32 v254, 4, v254')
    p.I(f'v_lshl_add_u32 v{vDv}, v252, 8, v254')
    p.I('s_lshl_b32 s41, s34, 12')
    p.I('s_lshl_b32 s42, s34, 11')
    p.I('s_lshl_b32 s52, s34, 15')
    p.I('s_lshl_b32 s40, s32, 10')
    p.I('s_add_u32 s52, s52, s40')
    p.I('s_lshl_b32 s53, s32, 19')
    p.I('s_add_u32 s53, s53, s42')
    p.I(f's_add_u32 s53, s53, {1536*256}')
    p.I('s_lshl_b32 s54, s32, 19')
    p.I('s_add_u32 s54, s54, s41')
    stages = [('Q', n) for n in range(16)] + [('T', n) for n in range(9)] + [('W', n) for n in range(16)]
    def loads(k, e):
        if k >= len(stages): return
        kind, n = stages[k]
        sl = SLOT(k)
        if kind == 'Q':
            e.I(f's_add_u32 m0, s41, {sl}')
            e.I(f's_add_u32 s40, s52, {n*262144}')
            for i in range(4):
                e.I(f'buffer_load_dwordx4 v{vDq+i}, s[20:23], s40 offen offset:{1024*i} lds')
        elif kind == 'W':
            e.I(f's_add_u32 m0, s41, {sl}')
            e.I(f's_add_u32 s40, s54, {n*32768}')
            for i in range(4):
                e.I(f'buffer_load_dwordx4 v{vDq+i}, s[24:27], s40 offen offset:{1024*i} lds')
        else:
            if n < 8:
                e.I(f's_add_u32 m0, s42, {sl}')
                e.I(f's_add_u32 s40, s53, {n*16384}')
                for i in range(2):
                    e.I(f'buffer_load_dwordx4 v{vDk+i}, s[12:15], s40 offen offset:{1024*i} lds')
            if n > 0:
                e.I(f's_add_u32 m0, s42, {sl+16384}')
                e.I(f's_add_u32 s43, s53, {(n-1)*16384}')
                for i in range(2):
                    e.I(f'buffer_load_dwordx4 v{vDv}, s[72:75], s43 offen offset:{1024*i} lds')
    cnt = {'issued': 8}; last = {}
    def track(k, e):
        e0 = Cap(); loads(k, e0)
        cnt['issued'] += nvm(e0.l); last[k] = cnt['issued']
        e.l += e0.l
    def extra(e, e0):
        cnt['issued'] += nvm(e0.l); e.l += e0.l
    if st:
        p.I('s_memtime s[60:61]')
        p.I('s_memrealtime s[62:63]')
    e = Cap()
    track(0, e); track(1, e)
    def warm(e0, what):
        e0.I('s_lshl_b32 s94, s33, 3')
        e0.I('s_add_u32 s94, s94, s34')
        e0.I(f'v_and_b32 v252, 15, v{L}')
        if what == 'wq':
            e0.I('v_lshrrev_b32 v253, 3, v252')
            e0.I('v_and_b32 v254, 7, v252')
            e0.I('v_lshlrev_b32 v254, 7, v254')
            e0.I('v_lshl_add_u32 v253, v253, 13, v254')
            e0.I('s_lshl_b32 s94, s94, 14')
            e0.I('s_lshl_b32 s95, s32, 10')
            e0.I('s_add_u32 s94, s94, s95')
            e0.I('buffer_load_dword v248, v253, s[20:23], s94 offen')
        elif what == 'kv':
            e0.I('v_lshlrev_b32 v253, 7, v252')
            e0.I('v_and_b32 v253, 0x180, v253')
            e0.I('s_lshl_b32 s95, s32, 19')
            e0.I('s_lshl_b32 s94, s94, 9')
            e0.I('s_add_u32 s94, s94, s95')
            e0.I(f's_add_u32 s94, s94, {1536*256}')
            e0.I('buffer_load_dword v255, v253, s[12:15], s94 offen')
            e0.I('buffer_load_dword v254, v253, s[72:75], s94 offen')
        else:
            e0.I('v_lshlrev_b32 v253, 7, v252')
            e0.I('s_lshl_b32 s95, s32, 19')
            e0.I('s_lshl_b32 s94, s94, 11')
            e0.I('s_add_u32 s94, s94, s95')
            e0.I('buffer_load_dword v255, v253, s[24:27], s94 offen')
    e0 = Cap(); warm(e0, 'wq')
    extra(e, e0)
    for t in e.l: p.I(t)
    tr_lane_bits(p, L, 1024, True, 252, 253, 254)
    p.I(f'v_bfe_u32 v254, v{L}, 2, 2')
    p.I('v_lshlrev_b32 v254, 6, v254')
    p.I('s_lshl_b32 s40, s35, 8')
    p.I('v_add_u32 v255, s40, v253')
    p.I('v_add_u32 v255, v255, v252')
    p.I('v_add_u32 v255, v255, v254')
    for t in range(4):
        p.I(f'v_xor_b32 v{vAq+t}, {64*t}, v255')
    p.I(f'v_and_b32 v252, 31, v{L}')
    p.I(f'v_lshrrev_b32 v253, 5, v{L}')
    p.I('v_bfe_u32 v254, v252, 1, 3')
    p.I('v_xor_b32 v254, v254, v253')
    p.I('v_lshlrev_b32 v254, 4, v254')
    p.I('v_lshl_add_u32 v254, v252, 7, v254')
    p.I('s_lshl_b32 s40, s36, 12')
    p.I(f'v_add_u32 v{vXq}, s40, v254')
    pi_row(p, L, 252, 254)
    p.I('v_and_b32 v254, 15, v252')
    p.I('v_xor_b32 v254, v254, v253')
    p.I('v_lshlrev_b32 v254, 4, v254')
    p.I('v_lshl_add_u32 v254, v252, 8, v254')
    for k in range(8):
        p.I(f'v_xor_b32 v{vK+k}, {32*k}, v254')
    tr_lane_bits(p, L, 256, True, 252, 253, 254)
    p.I(f'v_bfe_u32 v254, v{L}, 2, 2')
    p.I('v_lshlrev_b32 v254, 6, v254')
    p.I('v_add_u32 v255, v252, v253')
    p.I('v_add_u32 v255, v255, v254')
    for t in range(4):
        p.I(f'v_xor_b32 v{vV+t}, {64*t}, v255')
    p.I('s_mov_b32 s88, 0xffff0000')
    p.I(f's_mov_b32 s89, {f32hex(1.0/512)}')
    p.I(f's_mov_b32 s90, {f32hex(1e-5)}')
    def pr(a): return f'v[{a}:{a+1}]'
    def rbf(e, v):
        e.I(f'v_cvt_pk_bf16_f32 v{v}, v{v}, v{v}')
        e.I(f'v_lshlrev_b32 v{v}, 16, v{v}')
    def stats(e, A, B):
        e.I(f'v_mul_f32 v{B}, s89, v{B}')
        rbf(e, A); rbf(e, B)
        e.I(f'v_add_f32 v{B}, s90, v{B}'); rbf(e, B)
        e.I(f'v_sqrt_f32 v{B}, v{B}'); rbf(e, B)
        e.I(f'v_rcp_f32 v{B}, v{B}')
    E = 64; Dd = 128; A = 192; B = 194; P0 = 196; P1 = 198
    def red8(v):
        for mod in ('quad_perm:[1,0,3,2]', 'quad_perm:[2,3,0,1]', 'row_half_mirror'):
            p.I(f'v_add_f32_dpp v{v}, v{v}, v{v} {mod} row_mask:0xf bank_mask:0xf')
    for i in range(32):
        p.I(f'v_lshlrev_b32 v{E+2*i}, 16, v{XR+i}')
        p.I(f'v_and_b32 v{E+2*i+1}, s88, v{XR+i}')
    p.I(f'v_pk_add_f32 {pr(P0)}, {pr(E)}, {pr(E+2)}')
    p.I(f'v_pk_add_f32 {pr(P1)}, {pr(E+4)}, {pr(E+6)}')
    for i in range(4, 32, 2):
        p.I(f'v_pk_add_f32 {pr(P0)}, {pr(P0)}, {pr(E+2*i)}')
        p.I(f'v_pk_add_f32 {pr(P1)}, {pr(P1)}, {pr(E+2*i+2)}')
    p.I(f'v_pk_add_f32 {pr(P0)}, {pr(P0)}, {pr(P1)}')
    p.I(f'v_add_f32 v{A}, v{P0}, v{P0+1}')
    red8(A)
    p.I(f'v_mul_f32 v{A}, s89, v{A}')
    for i in range(32): p.I(f'v_pk_add_f32 {pr(Dd+2*i)}, {pr(E+2*i)}, {pr(A)} op_sel_hi:[1,0] neg_lo:[0,1] neg_hi:[0,1]')
    p.I(f'v_pk_mul_f32 {pr(P0)}, {pr(Dd)}, {pr(Dd)}')
    p.I(f'v_pk_mul_f32 {pr(P1)}, {pr(Dd+2)}, {pr(Dd+2)}')
    for i in range(2, 32, 2):
        p.I(f'v_pk_fma_f32 {pr(P0)}, {pr(Dd+2*i)}, {pr(Dd+2*i)}, {pr(P0)}')
        p.I(f'v_pk_fma_f32 {pr(P1)}, {pr(Dd+2*i+2)}, {pr(Dd+2*i+2)}, {pr(P1)}')
    p.I(f'v_pk_add_f32 {pr(P0)}, {pr(P0)}, {pr(P1)}')
    p.I(f'v_add_f32 v{B}, v{P0}, v{P0+1}')
    red8(B)
    stats(p, A, B)
    for i in range(8):
        for j in range(4): p.I(f'v_pk_add_f32 {pr(Dd+8*i+2*j)}, {pr(E+8*i+2*j)}, {pr(A)} op_sel_hi:[1,0] neg_lo:[0,1] neg_hi:[0,1]')
        for j in range(4): p.I(f'v_cvt_pk_bf16_f32 v{E+8*i+j}, v{Dd+8*i+2*j}, v{Dd+8*i+2*j+1}')
        for j in range(4):
            p.I(f'v_lshlrev_b32 v{Dd+8*i+2*j}, 16, v{E+8*i+j}')
            p.I(f'v_and_b32 v{Dd+8*i+2*j+1}, s88, v{E+8*i+j}')
        for j in range(4): p.I(f'v_pk_mul_f32 {pr(Dd+8*i+2*j)}, {pr(Dd+8*i+2*j)}, {pr(B)} op_sel_hi:[1,0]')
        for j in range(4): p.I(f'v_cvt_pk_bf16_f32 v{XR+4*i+j}, v{Dd+8*i+2*j}, v{Dd+8*i+2*j+1}')
        p.I(f'ds_write_b128 v239, {vr(XR+4*i,4)} offset:{8192*i}')
    def ln2_code():
        e = Cap()
        E2 = 32; D2 = 40; A2 = 48; B2 = 49; T2 = 50; SRC = 52; DST = 56
        e.I('s_add_u32 s91, s56, s32')
        e.I('s_bfe_u32 s94, s91, 0x30001')
        e.I(f'v_and_b32 v60, 7, v{L}')
        e.I('v_xor_b32 v60, s94, v60')
        e.I('v_lshlrev_b32 v60, 4, v60')
        e.I(f'v_lshrrev_b32 v61, 3, v{L}')
        e.I('v_lshl_add_u32 v60, v61, 13, v60')
        e.I('s_lshl_b32 s94, s91, 7')
        e.I('v_add_u32 v60, s94, v60')
        e.I(f'ds_read_b128 {vr(SRC,4)}, v60')
        for i in range(4):
            e.I(f'v_lshlrev_b32 v{E2+2*i}, 16, v{SRC+i}')
            e.I(f'v_and_b32 v{E2+2*i+1}, s88, v{SRC+i}')
        e.I(f'v_add_f32 v{A2}, v{E2}, v{E2+1}')
        for i in range(2, 8): e.I(f'v_add_f32 v{A2}, v{A2}, v{E2+i}')
        allreduce(e, 'v_add_f32', A2, T2)
        e.I(f'v_mul_f32 v{A2}, s89, v{A2}')
        for i in range(8): e.I(f'v_sub_f32 v{D2+i}, v{E2+i}, v{A2}')
        e.I(f'v_mul_f32 v{B2}, v{D2}, v{D2}')
        for i in range(1, 8): e.I(f'v_fmac_f32 v{B2}, v{D2+i}, v{D2+i}')
        allreduce(e, 'v_add_f32', B2, T2)
        stats(e, A2, B2)
        for i in range(8): e.I(f'v_sub_f32 v{D2+i}, v{E2+i}, v{A2}')
        for i in range(4): e.I(f'v_cvt_pk_bf16_f32 v{E2+i}, v{D2+2*i}, v{D2+2*i+1}')
        for i in range(4):
            e.I(f'v_lshlrev_b32 v{D2+2*i}, 16, v{E2+i}')
            e.I(f'v_and_b32 v{D2+2*i+1}, s88, v{E2+i}')
        for i in range(8): e.I(f'v_mul_f32 v{D2+i}, v{D2+i}, v{B2}')
        for i in range(4): e.I(f'v_cvt_pk_bf16_f32 v{DST+i}, v{D2+2*i}, v{D2+2*i+1}')
        e.I('s_lshl_b32 s94, s32, 10')
        e.I('s_add_u32 s94, s94, s57')
        e.I(f'buffer_store_dwordx4 {vr(DST,4)}, v{vL16}, s[8:11], s94 offen sc1')
        return e.l
    LN2 = ln2_code()
    LN2_ST = [1, 2, 3, 4]
    HPUB = 7

    QBUF = [128, 168]
    WBUF = [128, 160]
    def top(k):
        p.I(f's_waitcnt vmcnt({cnt["issued"] - last[k]}) lgkmcnt(0)')
        if st: p.I(f'v_writelane_b32 v0, s60, {k}')
        p.I('s_barrier')
        if st: p.I('s_memtime s[60:61]')
    def q_reads(k, n, e):
        b = QBUF[n % 2]; sl = SLOT(k)
        for t in range(4): p.I(f'v_add_u32 v{CUR+t}, {sl}, v{vAq+t}')
        for kk in range(2): p.I(f'v_xor_b32 v{CUR+4+kk}, {(4*(n%2)+2*kk)*16}, v{vXq}')
        for kk in range(2):
            e.I(f'ds_read_b128 {vr(b+4*kk,4)}, v{CUR+4+kk} offset:{(n//2)*8192}')
            for t in range(4):
                a = b + 8 + 16*kk + 4*t
                e.I(f'ds_read_b64_tr_b16 {vr(a,2)}, v{CUR+t} offset:{kk*16384}')
                e.I(f'ds_read_b64_tr_b16 {vr(a+2,2)}, v{CUR+t} offset:{kk*16384+4096}')
    def q_mfmas(n):
        b = QBUF[n % 2]
        r = []
        for kk in range(2):
            for t in range(4):
                cc = '0' if (n == 0 and kk == 0) else vr(ACC+16*t, 16)
                r.append(f'{MFMA} {vr(ACC+16*t,16)}, {vr(b+8+16*kk+4*t,4)}, {vr(b+4*kk,4)}, {cc}')
        return r
    vAw = 9; vXw = 11
    def w_setup():
        for i in range(4):
            p.I(f'v_xor_b32 v{vDq+i}, {4*i}, v{L}')
            p.I(f'v_lshlrev_b32 v{vDq+i}, 4, v{vDq+i}')
    def w_setup2():
        tr_lane_bits(p, L, 1024, True, 252, 253, 254)
        p.I(f'v_bfe_u32 v254, v{L}, 2, 2')
        p.I('v_lshlrev_b32 v254, 6, v254')
        p.I('s_lshl_b32 s40, s34, 7')
        p.I('v_add_u32 v253, s40, v253')
        for ta in range(2):
            p.I(f'v_add_u32 v255, {64*ta}, v253')
            p.I('v_xor_b32 v255, v255, v254')
            p.I(f'v_add_u32 v{vAw+ta}, v255, v252')
        p.I('s_lshl_b32 s40, s36, 12')
        p.I(f'v_subrev_u32 v{vXw}, s40, v{vXq}')
    def w_reads(k, n, e):
        b = WBUF[n % 2]; sl = SLOT(k)
        for ta in range(2): p.I(f'v_add_u32 v{CUR+ta}, {sl}, v{vAw+ta}')
        for kk in range(2): p.I(f'v_xor_b32 v{CUR+4+kk}, {(4*(n%2)+2*kk)*16}, v{vXw}')
        for kk in range(2):
            for tb in range(2):
                e.I(f'ds_read_b128 {vr(b+16*kk+4*tb,4)}, v{CUR+4+kk} offset:{(n//2)*8192 + tb*4096}')
            for ta in range(2):
                a = b + 16*kk + 8 + 4*ta
                e.I(f'ds_read_b64_tr_b16 {vr(a,2)}, v{CUR+ta} offset:{kk*16384}')
                e.I(f'ds_read_b64_tr_b16 {vr(a+2,2)}, v{CUR+ta} offset:{kk*16384+4096}')
    def w_mfmas(n):
        b = WBUF[n % 2]
        r = []
        for kk in range(2):
            for ta in range(2):
                for tb in range(2):
                    d = ACC + 16*(2*ta+tb)
                    cc = '0' if (n == 0 and kk == 0) else vr(d, 16)
                    r.append(f'{MFMA} {vr(d,16)}, {vr(b+16*kk+8+4*ta,4)}, {vr(b+16*kk+4*tb,4)}, {cc}')
        return r
    def g1_warm(e):
        e.I('s_lshl_b32 s40, s33, 3')
        e.I('s_add_u32 s40, s40, s34')
        e.I(f'v_lshrrev_b32 v252, 2, v{L}')
        e.I(f'v_and_b32 v252, 7, v252')
        e.I('s_mov_b32 s43, 3584')
        e.I('v_mul_lo_u32 v252, v252, s43')
        e.I(f'v_and_b32 v253, 3, v{L}')
        e.I('v_lshlrev_b32 v253, 3, v253')
        e.I('v_add_u32 v253, s32, v253')
        e.I('s_lshr_b32 s55, s32, 1')
        e.I('s_add_u32 s55, s55, 24')
        e.I('v_min_u32 v253, s55, v253')
        e.I('v_lshl_add_u32 v252, v253, 7, v252')
        e.I(f's_mul_i32 s43, s40, {8*3584}')
        e.I('buffer_load_dword v254, v252, s[16:19], s43 offen')

    fixups = []
    def maxtree(Sc):
        r = [f'v_max3_f32 v{vmx}, v{Sc}, v{Sc+1}, v{Sc+2}']
        for q in range(3, 31, 2): r.append(f'v_max3_f32 v{vmx}, v{vmx}, v{Sc+q}, v{Sc+q+1}')
        r.append(f'v_max_f32 v{vmx}, v{vmx}, v{Sc+31}')
        return r
    def t_stage(k, n):
        sl = SLOT(k)
        M = []
        V = []
        if n < 8:
            for kq in range(8): p.I(f'v_add_u32 v{CUR+kq}, {sl}, v{vK+kq}')
        if n > 0:
            for t in range(4): p.I(f'v_add_u32 v{CUR+8+t}, {sl}, v{vV+t}')
        req_pv = [0]*4
        f = 0
        if n < 8:
            Sn = S[n % 2]
            for a in range(2):
                for kq in range(8):
                    stg = STG + 4*(f % 8)
                    cc = ('0' if n == 0 else vr(NM, 16)) if kq == 0 else vr(Sn+16*a, 16)
                    M.append([[f'ds_read_b128 {vr(stg,4)}, v{CUR+kq} offset:{a*8192}'],
                              f'{MFMA} {vr(Sn+16*a,16)}, {vr(stg,4)}, {vr(QB+4*kq,4)}, {cc}', -1])
                    f += 1
        if n > 0:
            Sc = S[(n - 1) % 2]
            for jj in range(4):
                for t in range(4):
                    stg = STG + 4*(f % 8)
                    cc = '0' if (n == 1 and jj == 0) else vr(ACC+16*t, 16)
                    M.append([[f'ds_read_b64_tr_b16 {vr(stg,2)}, v{CUR+8+t} offset:{16384+jj*4096}',
                               f'ds_read_b64_tr_b16 {vr(stg+2,2)}, v{CUR+8+t} offset:{16384+jj*4096+1024}'],
                              f'{MFMA} {vr(ACC+16*t,16)}, {vr(stg,4)}, {vr(Sc+8*jj,4)}, {cc}', jj])
                    f += 1
        D = 6
        for j in range(min(D, len(M))):
            for r in M[j][0]: p.I(r)
        e = Cap()
        if n == 2:
            e0 = Cap(); warm(e0, 'wo'); extra(e, e0)
        if n == 4:
            e0 = Cap()
            e0.I('v_mov_b32 v254, 0')
            e0.I('buffer_load_dword v255, v254, s[96:99], 0 offen sc1')
            extra(e, e0)
        if n == 6:
            p.I('v_readfirstlane_b32 s43, v255')
            p.I('s_cmp_lt_u32 s43, 256')
            p.I('s_cbranch_scc1 L_back_w')
            p.I('s_lshl_b32 s40, s33, 3')
            p.I('s_add_u32 s40, s40, s34')
            p.I(f'v_lshlrev_b32 v253, 7, v{L}')
            p.I('s_lshl_b32 s43, s40, 13')
            p.I('buffer_load_dword v255, v253, s[8:11], s43 offen sc1')
            p.L('L_back_w:')
            e0 = Cap(); g1_warm(e0); extra(e, e0)
        track(k + 2, e)
        V += e.l
        if n > 0:
            if n == 1:
                p.I(f'v_mov_b32 v{vt}, v{vmx}')
                p.I(f'v_permlane32_swap_b32 v{vmx}, v{vt}')
                p.I(f'v_max_f32 v{vmx}, v{vmx}, v{vt}')
                for r in range(16): p.I(f'v_sub_f32 v{NM+r}, 0, v{vmx}')
                p.I(f'v_mov_b32 v{vl}, 0')
                for r in range(32): V.append(f'v_sub_f32 v{Sc+r}, v{Sc+r}, v{vmx}')
            else:
                p.I(f'v_cmp_lt_f32 vcc, s51, v{vmx}')
                p.I(f's_cbranch_vccnz L_fix{n}')
                p.L(f'L_back{n}:')
                fixups.append((n, Sc))
            for jj in range(4):
                r0 = Sc + 8*jj
                for r in range(8): V.append(f'v_exp_f32 v{r0+r}, v{r0+r}')
                for r in range(8): V.append(f'v_add_f32 v{vl}, v{vl}, v{r0+r}')
                for r in range(4): V.append(f'v_cvt_pk_bf16_f32 v{r0+r}, v{r0+2*r}, v{r0+2*r+1}')
                req_pv[jj] = len(V)
        nv0 = len(V)
        if n < 8: V += maxtree(S[n % 2])
        vpos = 0
        nm = len(M)
        for j in range(nm):
            need = req_pv[M[j][2]] if M[j][2] >= 0 else 0
            while vpos < need:
                p.I(V[vpos]); vpos += 1
            p.I(M[j][1])
            if j + D < nm:
                for r in M[j+D][0]: p.I(r)
            target = -(-(j+1) * len(V) // nm)
            if j < 17: target = min(target, nv0)
            while vpos < target:
                p.I(V[vpos]); vpos += 1
        while vpos < len(V):
            p.I(V[vpos]); vpos += 1

    for k, (kind, n) in enumerate(stages):
        p.C(f'==== stage {k}: {kind}{n}')
        top(k)
        if kind == 'Q':
            e = Cap()
            q_reads(k, n, e)
            track(k + 2, e)
            if n == 8:
                e0 = Cap(); warm(e0, 'kv'); extra(e, e0)
            if n in LN2_ST:
                q = LN2_ST.index(n); per = -(-len(LN2) // len(LN2_ST))
                e0 = Cap(); e0.l = LN2[q*per:(q+1)*per]; extra(e, e0)
            if n > 0: merge(p, q_mfmas(n - 1), e.l)
            else:
                for t in e.l: p.I(t)
            if n == 14: w_setup()
            if n == HPUB:
                p.I('s_cmp_lg_u32 s34, 0')
                p.I('s_cbranch_scc1 L_back_h')
                p.I('v_mov_b32 v252, 0')
                p.I('v_mov_b32 v253, 1')
                p.I('s_mov_b64 exec, 1')
                p.I('buffer_atomic_add v253, v252, s[96:99], 0 offen sc1')
                p.I('s_mov_b64 exec, -1')
                p.L('L_back_h:')
        elif kind == 'T':
            if n == 0:
                for t in q_mfmas(15): p.I(t)
                w_setup2()
                for r in range(64): p.I(f'v_mul_f32 v{ACC+r}, s50, v{ACC+r}')
                for t in range(4):
                    for tp in range(2):
                        for d in range(4):
                            r = ACC + 16*t + 8*tp + 2*d
                            p.I(f'v_cvt_pk_bf16_f32 v{QB+4*(2*t+tp)+d}, v{r}, v{r+1}')
            t_stage(k, n)
            if n == 8:
                p.I(f'v_mov_b32 v{vt}, v{vl}')
                p.I(f'v_permlane32_swap_b32 v{vl}, v{vt}')
                p.I(f'v_add_f32 v{vl}, v{vl}, v{vt}')
                p.I(f'v_rcp_f32 v{vl}, v{vl}')
                p.I('s_lshl_b32 s40, s35, 14')
                p.I(f'v_add_u32 v252, s40, v{vXq}')
                for t in range(4):
                    for tp in range(2):
                        r = ACC + 16*t + 8*tp
                        o = 128 + 4*(2*t+tp)
                        for j in range(8): p.I(f'v_mul_f32 v{r+j}, v{r+j}, v{vl}')
                        for d in range(4): p.I(f'v_cvt_pk_bf16_f32 v{o+d}, v{r+2*d}, v{r+2*d+1}')
                        p.I(f'v_xor_b32 v{CUR+2*t+tp}, {(4*(t%2)+2*tp)*16}, v252')
                        p.I(f'ds_write_b128 v{CUR+2*t+tp}, {vr(o,4)} offset:{(t//2)*8192}')
        else:
            e = Cap()
            w_reads(k, n, e)
            track(k + 2, e)
            if n > 0: merge(p, w_mfmas(n - 1), e.l)
            else:
                for t in e.l: p.I(t)
    for t in w_mfmas(15): p.I(t)
    p.I('s_lshl_b32 s40, s32, 21')
    p.I('s_lshl_b32 s43, s33, 16')
    p.I('s_add_u32 s40, s40, s43')
    p.I('s_add_u32 s40, s40, s41')
    p.I('s_add_u32 s43, s40, 32768')
    for ta in range(2):
        for tb in range(2):
            for tp in range(2):
                r = ACC + 16*(2*ta+tb) + 8*tp
                o = 128 + 4*(4*ta+2*tb+tp)
                for d in range(4): p.I(f'v_cvt_pk_bf16_f32 v{o+d}, v{r+2*d}, v{r+2*d+1}')
                p.I(f'buffer_store_dwordx4 {vr(o,4)}, v{vL16}, s[28:31], s{43 if tb else 40} offen offset:{(4*ta+2*tp)*512}{PART_SC}')
    if st: stamp_tail(p, 41)
    p.I('s_endpgm')
    for n, Sc in fixups:
        p.L(f'L_fix{n}:')
        p.I('s_nop 15')
        p.I(f'v_mov_b32 v{vt}, v{vmx}')
        p.I(f'v_permlane32_swap_b32 v{vmx}, v{vt}')
        p.I(f'v_max3_f32 v{vmx}, v{vmx}, v{vt}, 0')
        p.I(f'v_sub_f32 v{va}, 0, v{vmx}')
        p.I(f'v_exp_f32 v{va}, v{va}')
        for r in range(32): p.I(f'v_sub_f32 v{Sc+r}, v{Sc+r}, v{vmx}')
        for r in range(16): p.I(f'v_sub_f32 v{NM+r}, v{NM+r}, v{vmx}')
        p.I(f'v_mul_f32 v{vl}, v{vl}, v{va}')
        for r in range(64): p.I(f'v_mul_f32 v{ACC+r}, v{ACC+r}, v{va}')
        p.I('s_nop 3')
        p.I(f's_branch L_back{n}')

    p.L('L_gemm1:')
    p.I('s_sub_u32 s3, s2, 256')
    p.I('s_cmp_ge_u32 s3, 224')
    p.I('s_cbranch_scc1 L_main_done')
    p.I('s_and_b32 s40, s3, 7')
    p.I('s_lshr_b32 s41, s3, 3')
    p.I('s_and_b32 s32, s41, 7')
    p.I('s_and_b32 s33, s41, 24')
    p.I('s_add_u32 s33, s33, s40')
    p.I('s_lshr_b32 s42, s40, 1')
    p.I('s_add_u32 s42, s42, 24')
    p.I('s_and_b32 s43, s40, 1')
    p.I('s_lshl_b32 s43, s43, 2')
    p.I('s_add_u32 s43, s43, s32')
    p.I('s_cmp_ge_u32 s41, 24')
    p.I('s_cselect_b32 s33, s42, s33')
    p.I('s_cselect_b32 s32, s43, s32')
    p.I('s_load_dwordx4 s[4:7], s[0:1], 48')
    p.I('s_load_dwordx2 s[50:51], s[0:1], 64')
    p.I('s_load_dwordx4 s[92:95], s[0:1], 88')
    lane_setup(p)
    p.I('s_waitcnt lgkmcnt(0)')
    p.I('s_mov_b32 s48, s94')
    p.I('s_mov_b32 s49, s95')
    srd(p, 96, 92, 93, 256)
    srd(p, 8, 4, 5, 2048*1792*2)
    srd(p, 12, 48, 49, 2 << 20, WS_H)
    srd(p, 16, 6, 7, 1792*2)
    srd(p, 20, 48, 49, U_BYTES, WS_U)
    srd(p, 24, 50, 51, 1792*2048*2)
    p.I(f's_mul_i32 s44, s34, {16*3584}')
    p.I('s_lshl_b32 s40, s33, 7')
    p.I('s_add_u32 s44, s44, s40')
    p.I('s_lshl_b32 s45, s34, 14')
    p.I('s_lshl_b32 s40, s32, 7')
    p.I('s_add_u32 s45, s45, s40')
    def g1_hooks(e, n):
        if n == -1:
            e.I('s_lshl_b32 s40, s33, 7')
            e.I('s_lshl_b32 s41, s35, 6')
            e.I('s_add_u32 s40, s40, s41')
            e.I('s_lshl_b32 s41, s37, 5')
            e.I('s_add_u32 s46, s40, s41')
            e.I('v_lshrrev_b32 v252, 5, v1')
            e.I('v_lshlrev_b32 v20, 4, v252')
            e.I('buffer_load_dwordx4 v[16:19], v20, s[16:19], s46 offen')
        if n == 15:
            e.I('s_lshr_b32 s42, s3, 3')
            e.I('s_lshl_b32 s42, s42, 3')
            e.I('s_add_u32 s42, s42, s34')
            e.I('s_lshl_b32 s42, s42, 15')
            e.I('s_and_b32 s43, s3, 3')
            e.I('s_lshl_b32 s43, s43, 10')
            e.I('s_add_u32 s42, s42, s43')
            e.I('v_lshrrev_b32 v252, 3, v1')
            e.I('v_and_b32 v253, 7, v1')
            e.I('v_lshlrev_b32 v253, 7, v253')
            e.I('v_lshl_add_u32 v252, v252, 12, v253')
            e.I('buffer_load_dword v22, v252, s[24:27], s42 offen')
    def g1_gate(ph):
        if ph == 0:
            p.I('v_mov_b32 v24, 0')
            p.I('buffer_load_dword v25, v24, s[96:99], 0 offen sc1')
        else:
            p.I('s_waitcnt vmcnt(8)')
            p.L('L_g1_poll:')
            p.I('v_readfirstlane_b32 s40, v25')
            p.I('s_cmp_ge_u32 s40, 256')
            p.I('s_cbranch_scc1 L_g1_go')
            p.I('s_sleep 8')
            p.I('buffer_load_dword v25, v24, s[96:99], 0 offen sc1')
            p.I('s_waitcnt vmcnt(0)')
            p.I('s_branch L_g1_poll')
            p.L('L_g1_go:')
    gemm64(p, 'g1', 16, 'tr', 8, 12, 3584, 1024, 44, 45, 128*3584, 128*1024, g1_hooks, g1_gate, ' sc1')
    p.I('s_mov_b32 s40, 0xffff0000')
    k0 = math.sqrt(2.0/math.pi)
    p.I(f's_mov_b32 s41, {f32hex(-2.0*k0*LOG2E)}')
    p.I(f's_mov_b32 s42, {f32hex(-2.0*k0*LOG2E*0.044715)}')
    for i in range(4):
        p.I(f'v_lshlrev_b32 v{72+2*i}, 16, v{16+i}')
        p.I(f'v_and_b32 v{72+2*i+1}, s40, v{16+i}')
    for j in range(8): p.I(f'v_add_f32 v{64+j}, v{64+j}, v{72+j}')
    for j in range(8): p.I(f'v_mul_f32 v{72+j}, v{64+j}, v{64+j}')
    p.I('v_mov_b32 v21, s41')
    for j in range(8): p.I(f'v_fma_f32 v{72+j}, v{72+j}, s42, v21')
    for j in range(8): p.I(f'v_mul_f32 v{72+j}, v{72+j}, v{64+j}')
    for j in range(8): p.I(f'v_exp_f32 v{72+j}, v{72+j}')
    for j in range(8): p.I(f'v_add_f32 v{72+j}, 1.0, v{72+j}')
    for j in range(8): p.I(f'v_rcp_f32 v{72+j}, v{72+j}')
    for j in range(8): p.I(f'v_mul_f32 v{64+j}, v{64+j}, v{72+j}')
    for d in range(4): p.I(f'v_cvt_pk_bf16_f32 v{80+d}, v{64+2*d}, v{64+2*d+1}')
    p.I('v_and_b32 v252, 31, v1')
    p.I('s_lshl_b32 s40, s32, 6')
    p.I('s_lshl_b32 s41, s36, 5')
    p.I('s_add_u32 s40, s40, s41')
    p.I('v_add_u32 v252, s40, v252')
    p.I('s_mov_b32 s41, 3584')
    p.I('v_mul_lo_u32 v252, v252, s41')
    p.I('v_add_u32 v252, v252, v20')
    p.I('buffer_store_dwordx4 v[80:83], v252, s[20:23], s46 offen')
    if STAMPS and STAG in ('g1', 'both'): stamp_tail(p, 16)
    p.L('L_main_done:')
    p.I('s_endpgm')
    return p.finalize()

def gen_final():
    p = Prog()
    p.I('s_cmp_ge_u32 s2, 256')
    p.I('s_cbranch_scc1 L_fin_done')
    p.I('s_lshr_b32 s3, s2, 3')
    p.I('s_bfe_u32 s32, s2, 0x10002')
    p.I('s_lshl_b32 s32, s32, 2')
    p.I('s_lshr_b32 s33, s3, 3')
    p.I('s_add_u32 s32, s32, s33')
    p.I('s_and_b32 s33, s2, 3')
    p.I('s_lshl_b32 s33, s33, 3')
    p.I('s_and_b32 s40, s3, 7')
    p.I('s_add_u32 s33, s33, s40')
    p.I('s_load_dwordx2 s[4:5], s[0:1], 0')
    p.I('s_load_dwordx4 s[44:47], s[0:1], 64')
    p.I('s_load_dwordx2 s[6:7], s[0:1], 80')
    p.I('s_load_dwordx2 s[48:49], s[0:1], 96')
    lane_setup(p)
    p.I('s_waitcnt lgkmcnt(0)')
    srd(p, 8, 48, 49, U_BYTES, WS_U)
    srd(p, 12, 44, 45, 1792*2048*2)
    srd(p, 16, 46, 47, 2048*2)
    srd(p, 20, 4, 5, 2 << 20)
    srd(p, 24, 6, 7, 2 << 20)
    srd(p, 28, 48, 49, 16 << 20, WS_PART)
    p.I('s_lshl_b32 s40, s32, 6')
    p.I('s_lshl_b32 s41, s34, 3')
    p.I('s_add_u32 s40, s40, s41')
    p.I('s_mul_i32 s52, s40, 3584')
    p.I('s_lshl_b32 s53, s34, 16')
    p.I('s_lshl_b32 s40, s33, 7')
    p.I('s_add_u32 s53, s53, s40')
    def fin_hooks(e, n):
        if n == -1:
            e.I('s_bfe_u32 s40, s2, 0x10002')
            e.I('s_lshl_b32 s40, s40, 8')
            e.I('s_lshl_b32 s41, s3, 3')
            e.I('s_add_u32 s40, s40, s41')
            e.I('s_add_u32 s40, s40, s34')
            e.I('s_mul_i32 s40, s40, 3584')
            e.I('v_min_u32 v252, 27, v1')
            e.I('v_lshlrev_b32 v252, 7, v252')
            e.I('buffer_load_dword v23, v252, s[8:11], s40 offen')
            e.I('v_and_b32 v252, 31, v1')
            e.I('s_lshl_b32 s40, s33, 6')
            e.I('s_lshl_b32 s41, s36, 5')
            e.I('s_add_u32 s55, s40, s41')
            e.I('v_add_u32 v253, s55, v252')
            e.I('v_lshlrev_b32 v24, 1, v253')
            e.I('s_lshl_b32 s41, s32, 7')
            e.I('s_lshl_b32 s42, s35, 6')
            e.I('s_add_u32 s41, s41, s42')
            e.I('s_lshl_b32 s42, s37, 5')
            e.I('s_add_u32 s54, s41, s42')
            e.I('v_lshrrev_b32 v254, 5, v1')
            e.I('v_lshlrev_b32 v254, 4, v254')
            e.I('v_lshl_add_u32 v21, v253, 10, v254')
            e.I('s_lshl_b32 s55, s55, 10')
            e.I('s_lshl_b32 s41, s54, 5')
            e.I('s_add_u32 s55, s55, s41')
            e.I('v_lshlrev_b32 v25, 4, v1')
        if 2 <= n < 10:
            g = n - 2
            e.I(f's_add_u32 s42, s55, {g << 21}')
            e.I(f'buffer_load_dwordx4 {vr(96+4*g,4)}, v25, s[28:31], s42 offen')
        if n == 1:
            e.I('buffer_load_ushort v20, v24, s[16:19], 0 offen')
            e.I('buffer_load_dwordx4 v[16:19], v21, s[20:23], s54 offen')
    gemm64(p, 'g2', 14, 'row', 8, 12, 3584, 4096, 52, 53, 256, 128*4096, fin_hooks)
    p.I('s_mov_b32 s40, 0xffff0000')
    p.I(f's_mov_b32 s41, {f32hex(-LOG2E)}')
    p.I('v_lshlrev_b32 v20, 16, v20')
    for j in range(8): p.I(f'v_add_f32 v{64+j}, v{64+j}, v20')
    for j in range(8): p.I(f'v_mul_f32 v{72+j}, s41, v{64+j}')
    for j in range(8): p.I(f'v_exp_f32 v{72+j}, v{72+j}')
    for j in range(8): p.I(f'v_add_f32 v{72+j}, 1.0, v{72+j}')
    for j in range(8): p.I(f'v_rcp_f32 v{72+j}, v{72+j}')
    for j in range(8): p.I(f'v_mul_f32 v{64+j}, v{64+j}, v{72+j}')
    for g in range(8):
        for i in range(4):
            if g == 0:
                p.I(f'v_lshlrev_b32 v{72+2*i}, 16, v{96+i}')
                p.I(f'v_and_b32 v{72+2*i+1}, s40, v{96+i}')
            else:
                p.I(f'v_lshlrev_b32 v{80+2*i}, 16, v{96+4*g+i}')
                p.I(f'v_and_b32 v{80+2*i+1}, s40, v{96+4*g+i}')
        if g:
            for j in range(8): p.I(f'v_add_f32 v{72+j}, v{72+j}, v{80+j}')
    for i in range(4):
        p.I(f'v_lshlrev_b32 v{80+2*i}, 16, v{16+i}')
        p.I(f'v_and_b32 v{80+2*i+1}, s40, v{16+i}')
    for j in range(8): p.I(f'v_fma_f32 v{80+j}, v{72+j}, v{64+j}, v{80+j}')
    for d in range(4): p.I(f'v_cvt_pk_bf16_f32 v{88+d}, v{80+2*d}, v{80+2*d+1}')
    p.I('buffer_store_dwordx4 v[88:91], v21, s[24:27], s54 offen')
    if STAMPS and STAG == 'g2': stamp_tail(p, 14)
    p.L('L_fin_done:')
    p.I('s_endpgm')
    return p.finalize()

def kd(name, vgpr, sgpr=102):
    return f""".p2align 6
.amdhsa_kernel {name}
  .amdhsa_next_free_vgpr {vgpr}
  .amdhsa_next_free_sgpr {sgpr}
  .amdhsa_accum_offset {vgpr}
  .amdhsa_group_segment_fixed_size 0
  .amdhsa_kernarg_size 104
  .amdhsa_user_sgpr_count 2
  .amdhsa_user_sgpr_kernarg_segment_ptr 1
  .amdhsa_system_sgpr_workgroup_id_x 1
.end_amdhsa_kernel
"""

def main(path):
    hdr = open('recurrent_scan__sliding_block_cached__mixer_token_mlp__prompt.s.ref').read().split('; Override launch')[0]
    out = [hdr.rstrip('\n')]
    out.append('; @launch kernel=main_kernel grid=(480,1,1) block=(512,1,1) lds=163840')
    out.append('; @launch kernel=final_kernel grid=(256,1,1) block=(512,1,1) lds=163840')
    out.append('.amdgcn_target "amdgcn-amd-amdhsa--gfx950"\n.text')
    for name, body in (('main_kernel', gen_main()), ('final_kernel', gen_final())):
        out.append(f'.globl {name}\n.p2align 8\n.type {name},@function\n{name}:')
        out.append(body)
    out.append('.section .rodata,"a"')
    out.append(kd('main_kernel', 256, 102))
    out.append(kd('final_kernel', 256, 80))
    open(path, 'w').write('\n'.join(out))

if __name__ == '__main__':
    main(sys.argv[1] if len(sys.argv) > 1 else 'recurrent_scan__sliding_block_cached__mixer_token_mlp__prompt.s')
```

```python
import sys, math, os, struct
sys.path.insert(0, 'gen')
from asmgen import Prog

WS_XN = 0
WS_H = 2 << 20
WS_U = 4 << 20
WS_PART = 8 << 20
WS_S = 6 << 20
WS_KF = 24 << 20
WS_VF = 25 << 20
U_BYTES = 512 * 1792 * 2

LOG2E = 1.4426950408889634
P0 = int(os.environ.get('P0', '4'))
PRIO = int(os.environ.get('PRIO', '1'))
G1W = int(os.environ.get('G1W', '4'))
PART_SC = os.environ.get('PART_SC', ' sc1')
STAG = os.environ.get('STAG', 'main')
STAMPS = bool(int(os.environ.get('STAMPS', '0')))
def f32hex(x):
    return '0x%08x' % struct.unpack('<I', struct.pack('<f', x))[0]

def vr(a, n=1):
    return f'v{a}' if n == 1 else f'v[{a}:{a+n-1}]'

def srd(p, d, lo, hi, nbytes, add=0):
    if add:
        p.I(f's_add_u32 s{d}, s{lo}, {add}')
        p.I(f's_addc_u32 s{d+1}, s{hi}, 0')
        p.I(f's_and_b32 s{d+1}, s{d+1}, 0xffff')
    else:
        p.I(f's_mov_b32 s{d}, s{lo}')
        p.I(f's_and_b32 s{d+1}, s{hi}, 0xffff')
    p.I(f's_mov_b32 s{d+2}, {nbytes}')
    p.I(f's_mov_b32 s{d+3}, 0x20000')

def allreduce(p, op, v, t):
    p.I(f'{op}_dpp v{v}, v{v}, v{v} quad_perm:[1,0,3,2] row_mask:0xf bank_mask:0xf')
    p.I(f'{op}_dpp v{v}, v{v}, v{v} quad_perm:[2,3,0,1] row_mask:0xf bank_mask:0xf')
    p.I(f'{op}_dpp v{v}, v{v}, v{v} row_half_mirror row_mask:0xf bank_mask:0xf')
    p.I(f'{op}_dpp v{v}, v{v}, v{v} row_mirror row_mask:0xf bank_mask:0xf')
    p.I(f'v_mov_b32 v{t}, v{v}')
    p.I(f'v_permlane16_swap_b32 v{v}, v{t}')
    p.I(f'{op} v{v}, v{v}, v{t}')
    p.I(f'v_mov_b32 v{t}, v{v}')
    p.I(f'v_permlane32_swap_b32 v{v}, v{t}')
    p.I(f'{op} v{v}, v{v}, v{t}')

def lane_setup(p, lane=1):
    p.I(f'v_and_b32 v{lane}, 63, v0')
    p.I('v_lshrrev_b32 v252, 6, v0')
    p.I('v_readfirstlane_b32 s34, v252')

def tr_lane_bits(p, lane, rowbytes, pi, dst_row, dst_col, t1):
    sh = int(math.log2(rowbytes))
    p.I(f'v_lshrrev_b32 v{dst_row}, 5, v{lane}')
    p.I(f'v_lshlrev_b32 v{dst_row}, 3, v{dst_row}')
    p.I(f'v_bfe_u32 v{t1}, v{lane}, 2, 2')
    p.I(f'v_add_u32 v{dst_row}, v{dst_row}, v{t1}')
    p.I(f'v_lshlrev_b32 v{dst_row}, {sh}, v{dst_row}')
    p.I(f'v_bfe_u32 v{dst_col}, v{lane}, 4, 1')
    p.I(f'v_lshlrev_b32 v{dst_col}, 5, v{dst_col}')
    if pi:
        p.I(f'v_and_b32 v{t1}, 1, v{lane}')
        p.I(f'v_lshl_add_u32 v{dst_col}, v{t1}, 4, v{dst_col}')
        p.I(f'v_bfe_u32 v{t1}, v{lane}, 1, 1')
        p.I(f'v_lshl_add_u32 v{dst_col}, v{t1}, 3, v{dst_col}')
    else:
        p.I(f'v_and_b32 v{t1}, 3, v{lane}')
        p.I(f'v_lshl_add_u32 v{dst_col}, v{t1}, 3, v{dst_col}')

def pi_row(p, src, dst, t1):
    p.I(f'v_and_b32 v{dst}, 19, v{src}')
    p.I(f'v_bfe_u32 v{t1}, v{src}, 2, 1')
    p.I(f'v_lshl_add_u32 v{dst}, v{t1}, 3, v{dst}')
    p.I(f'v_bfe_u32 v{t1}, v{src}, 3, 1')
    p.I(f'v_lshl_add_u32 v{dst}, v{t1}, 2, v{dst}')

MFMA = 'v_mfma_f32_32x32x16_bf16'

class Cap:
    def __init__(self): self.l = []
    def I(self, t): self.l.append(t)

def nvm(lst):
    return sum(1 for t in lst if t.startswith('buffer_'))

def merge(p, mf, fill):
    pos = 0
    n = len(mf)
    for j, m in enumerate(mf):
        p.I(m)
        tgt = -(-(j + 1) * len(fill) // n)
        while pos < tgt:
            p.I(fill[pos]); pos += 1

def stamp_tail(p, n, wsl=48):
    p.I('s_waitcnt lgkmcnt(0)')
    p.I(f'v_writelane_b32 v0, s60, {n}')
    p.I('s_memtime s[60:61]')
    p.I('s_waitcnt vmcnt(0) lgkmcnt(0)')
    p.I(f'v_writelane_b32 v0, s60, {n+1}')
    p.I('v_writelane_b32 v0, s62, 60')
    p.I('s_memrealtime s[62:63]')
    p.I('s_waitcnt vmcnt(0) lgkmcnt(0)')
    p.I('v_writelane_b32 v0, s62, 61')
    srd(p, 64, wsl, wsl+1, 1 << 20, 64 << 20)
    p.I('s_lshl_b32 s40, s2, 11')
    p.I('s_lshl_b32 s43, s34, 8')
    p.I('s_add_u32 s40, s40, s43')
    p.I('v_lshlrev_b32 v252, 2, v1')
    p.I('buffer_store_dword v0, v252, s[64:67], s40 offen')

def gen_prep():
    p = Prog()
    p.I('s_cmp_ge_u32 s2, 832')
    p.I('s_cbranch_scc1 L_ln_done')
    p.I('s_cmp_ge_u32 s2, 576')
    p.I('s_cbranch_scc1 L_vf')
    p.I('s_cmp_ge_u32 s2, 512')
    p.I('s_cbranch_scc1 L_kf')
    p.I('s_load_dwordx2 s[4:5], s[0:1], 0')
    p.I('s_load_dwordx2 s[6:7], s[0:1], 96')
    p.I('s_load_dwordx4 s[20:23], s[0:1], 24')
    p.I('v_lshrrev_b32 v1, 6, v0')
    p.I('v_and_b32 v2, 63, v0')
    p.I('v_readfirstlane_b32 s34, v1')
    p.I('s_lshl_b32 s3, s2, 2')
    p.I('v_add_u32 v1, s3, v1')
    p.I('v_lshlrev_b32 v1, 10, v1')
    p.I('v_lshl_add_u32 v1, v2, 4, v1')
    p.I('s_waitcnt lgkmcnt(0)')
    srd(p, 8, 4, 5, 2 << 20)
    srd(p, 12, 6, 7, 4 << 20)
    p.I('buffer_load_dwordx4 v[8:11], v1, s[8:11], 0 offen')
    srd(p, 24, 20, 21, 4 << 20)
    srd(p, 28, 22, 23, 4 << 20)
    p.I('s_and_b32 s32, s2, 7')
    p.I('s_lshr_b32 s33, s2, 3')
    p.I('s_lshl_b32 s33, s33, 2')
    p.I('s_add_u32 s33, s33, s34')
    p.I('v_and_b32 v4, 15, v2')
    p.I('v_lshrrev_b32 v5, 3, v4')
    p.I('v_and_b32 v6, 7, v4')
    p.I('v_lshlrev_b32 v6, 7, v6')
    p.I('v_lshl_add_u32 v5, v5, 13, v6')
    p.I('s_lshl_b32 s35, s33, 14')
    p.I('s_lshl_b32 s36, s32, 10')
    p.I('s_add_u32 s35, s35, s36')
    p.I('buffer_load_dword v44, v5, s[24:27], s35 offen')
    p.I('v_lshlrev_b32 v5, 7, v4')
    p.I('s_lshl_b32 s35, s33, 11')
    p.I('s_lshl_b32 s36, s32, 19')
    p.I('s_add_u32 s35, s35, s36')
    p.I('buffer_load_dword v45, v5, s[28:31], s35 offen')
    p.I('s_mov_b32 s16, 0xffff0000')
    p.I(f's_mov_b32 s17, {f32hex(1.0/512)}')
    p.I(f's_mov_b32 s18, {f32hex(1e-5)}')
    E = 16
    def unpack(src):
        for i in range(4):
            p.I(f'v_lshlrev_b32 v{E+2*i}, 16, v{src+i}')
            p.I(f'v_and_b32 v{E+2*i+1}, s16, v{src+i}')
    def rb(v):
        p.I(f'v_cvt_pk_bf16_f32 v{v}, v{v}, v{v}')
        p.I(f'v_lshlrev_b32 v{v}, 16, v{v}')
    def ln(dst):
        p.I(f'v_add_f32 v3, v{E}, v{E+1}')
        for i in range(2, 8): p.I(f'v_add_f32 v3, v3, v{E+i}')
        allreduce(p, 'v_add_f32', 3, 4)
        p.I('v_mul_f32 v3, s17, v3')
        for i in range(8): p.I(f'v_sub_f32 v{24+i}, v{E+i}, v3')
        p.I('v_mul_f32 v5, v24, v24')
        for i in range(1, 8): p.I(f'v_fmac_f32 v5, v{24+i}, v{24+i}')
        allreduce(p, 'v_add_f32', 5, 4)
        p.I('v_mul_f32 v5, s17, v5')
        rb(3); rb(5)
        p.I('v_add_f32 v5, s18, v5'); rb(5)
        p.I('v_sqrt_f32 v5, v5'); rb(5)
        p.I('v_rcp_f32 v5, v5')
        for i in range(8): p.I(f'v_sub_f32 v{24+i}, v{E+i}, v3')
        for i in range(4): p.I(f'v_cvt_pk_bf16_f32 v{32+i}, v{24+2*i}, v{24+2*i+1}')
        for i in range(4):
            p.I(f'v_lshlrev_b32 v{24+2*i}, 16, v{32+i}')
            p.I(f'v_and_b32 v{24+2*i+1}, s16, v{32+i}')
        for i in range(8): p.I(f'v_mul_f32 v{24+i}, v{24+i}, v5')
        for i in range(4): p.I(f'v_cvt_pk_bf16_f32 v{dst+i}, v{24+2*i}, v{24+2*i+1}')
    unpack(8)
    ln(36)
    p.I('buffer_store_dwordx4 v[36:39], v1, s[12:15], 0 offen')
    unpack(36)
    ln(40)
    p.I(f's_mov_b32 s19, {WS_H}')
    p.I('buffer_store_dwordx4 v[40:43], v1, s[12:15], s19 offen')
    p.I('s_endpgm')
    p.L('L_kf:')
    p.I('s_load_dwordx2 s[4:5], s[0:1], 8')
    p.I('s_load_dwordx2 s[6:7], s[0:1], 96')
    p.I('s_sub_u32 s3, s2, 512')
    p.I('s_and_b32 s32, s3, 7')
    p.I('s_lshr_b32 s33, s3, 3')
    p.I('v_lshrrev_b32 v1, 4, v0')
    p.I('v_and_b32 v2, 15, v0')
    p.I('s_waitcnt lgkmcnt(0)')
    srd(p, 8, 4, 5, 4 << 20)
    srd(p, 12, 6, 7, 1 << 20, WS_KF)
    p.I('s_lshl_b32 s35, s32, 19')
    p.I('s_lshl_b32 s36, s33, 14')
    p.I('s_add_u32 s35, s35, s36')
    p.I(f's_add_u32 s35, s35, {1536*256}')
    p.I('v_lshlrev_b32 v3, 4, v0')
    for it in range(4):
        p.I(f'buffer_load_dwordx4 v[{8+4*it}:{11+4*it}], v3, s[8:11], s35 offen offset:{0}' if it == 0 else
            f'buffer_load_dwordx4 v[{8+4*it}:{11+4*it}], v{31+it}, s[8:11], s35 offen')
        if it < 3: p.I(f'v_add_u32 v{32+it}, {4096*(it+1)}, v3')
    p.I('s_lshl_b32 s35, s32, 17')
    p.I('s_add_u32 s35, s35, s36')
    p.I('v_lshrrev_b32 v4, 1, v2')
    p.I('v_and_b32 v5, 1, v2')
    p.I('v_lshlrev_b32 v4, 10, v4')
    p.I('v_lshl_add_u32 v4, v5, 9, v4')
    for it in range(4):
        p.I(f'v_add_u32 v6, {16*(it%2)}, v1')
        pi_row(p, 6, 7, 24)
        p.I('v_lshl_add_u32 v7, v7, 4, v4')
        p.I(f'v_add_u32 v{40+it}, {8192*(it//2)}, v7')
        p.I(f'buffer_store_dwordx4 v[{8+4*it}:{11+4*it}], v{40+it}, s[12:15], s35 offen')
    p.I('s_endpgm')
    p.L('L_vf:')
    p.I('s_load_dwordx2 s[4:5], s[0:1], 16')
    p.I('s_load_dwordx2 s[6:7], s[0:1], 96')
    p.I('s_sub_u32 s3, s2, 576')
    p.I('s_and_b32 s32, s3, 7')
    p.I('s_lshr_b32 s33, s3, 3')
    p.I('v_and_b32 v1, 63, v0')
    p.I('v_lshrrev_b32 v2, 6, v0')
    pi_row(p, 1, 3, 4)
    p.I('v_lshl_add_u32 v3, v2, 5, v3')
    p.I('v_lshlrev_b32 v3, 1, v3')
    p.I('v_lshrrev_b32 v4, 5, v1')
    p.I('v_lshl_add_u32 v3, v4, 11, v3')
    p.I('s_waitcnt lgkmcnt(0)')
    srd(p, 8, 4, 5, 4 << 20)
    srd(p, 12, 6, 7, 1 << 20, WS_VF)
    p.I('s_lshl_b32 s35, s32, 19')
    p.I('s_lshl_b32 s36, s33, 12')
    p.I('s_add_u32 s35, s35, s36')
    p.I(f's_add_u32 s35, s35, {1536*256}')
    for j in range(8):
        p.I(f'buffer_load_ushort v{16+j}, v3, s[8:11], s35 offen offset:{256*j}')
    p.I('s_lshl_b32 s35, s32, 17')
    p.I('s_add_u32 s35, s35, s36')
    p.I('v_lshlrev_b32 v5, 4, v0')
    for j in range(4):
        p.I(f'v_lshl_or_b32 v{8+j}, v{17+2*j}, 16, v{16+2*j}')
    p.I('buffer_store_dwordx4 v[8:11], v5, s[12:15], s35 offen')
    p.L('L_ln_done:')
    p.I('s_endpgm')
    return p.finalize()

def gemm64(p, tag, nst, a_kind, sA, sB, a_stride, b_stride, s_aoff, s_boff, a_step, b_step, hooks, gate=None, bflag=''):
    NS = 5
    L = 1
    ACC = 64
    st = STAMPS and (tag == STAG or (STAG == 'both' and tag == 'g1'))
    p.I('s_lshr_b32 s37, s34, 2')
    p.I('s_bfe_u32 s35, s34, 0x10001')
    p.I('s_and_b32 s36, s34, 1')
    def dma128(dst0, stride):
        p.I(f'v_lshrrev_b32 v252, 3, v{L}')
        p.I(f'v_and_b32 v253, 7, v{L}')
        p.I(f'v_bfe_u32 v254, v{L}, 4, 1')
        p.I(f'v_lshlrev_b32 v254, 2, v254')
        p.I(f'v_xor_b32 v253, v253, v254')
        p.I(f's_mov_b32 s38, {stride}')
        p.I(f'v_mul_lo_u32 v252, v252, s38')
        p.I(f'v_lshl_add_u32 v{dst0}, v253, 4, v252')
        p.I(f'v_add_u32 v{dst0+1}, {8*stride - 1024}, v{dst0}')
    dma128(2, b_stride)
    if a_kind == 'tr':
        dma128(4, a_stride)
    else:
        p.I(f'v_lshrrev_b32 v252, 4, v{L}')
        p.I('s_and_b32 s38, s34, 1')
        p.I('s_lshl_b32 s38, s38, 3')
        p.I(f'v_and_b32 v253, 15, v{L}')
        p.I(f's_mov_b32 s39, {a_stride}')
        for i in range(2):
            p.I(f'v_add_u32 v254, {4*i}, v252')
            p.I('v_add_u32 v255, s38, v254')
            p.I('v_xor_b32 v255, v253, v255')
            p.I('v_mul_lo_u32 v254, v254, s39')
            p.I(f'v_lshl_add_u32 v{4+i}, v255, 4, v254')
            if i: p.I(f'v_subrev_u32 v{4+i}, {1024*i}, v{4+i}')
    p.I('s_lshl_b32 s39, s34, 11')
    def loads(e, n, parts='ab'):
        sl = (n % NS) * 32768
        if 'a' in parts:
            e.I(f's_add_u32 m0, s39, {sl}')
            e.I(f's_add_u32 s40, s{s_aoff}, {n*a_step}')
            e.I(f'buffer_load_dwordx4 v4, s[{sA}:{sA+3}], s40 offen lds')
            e.I(f'buffer_load_dwordx4 v5, s[{sA}:{sA+3}], s40 offen offset:1024 lds')
        if 'b' in parts:
            e.I(f's_add_u32 m0, s39, {sl+16384}')
            e.I(f's_add_u32 s41, s{s_boff}, {n*b_step}')
            e.I(f'buffer_load_dwordx4 v2, s[{sB}:{sB+3}], s41 offen{bflag} lds')
            e.I(f'buffer_load_dwordx4 v3, s[{sB}:{sB+3}], s41 offen offset:1024{bflag} lds')
    if st:
        p.I('s_memtime s[60:61]')
        p.I('s_memrealtime s[62:63]')
    issued = 0; last = {}
    if gate is None:
        for n in range(NS - 1):
            loads(p, n); issued += 4; last[n] = issued
    else:
        gate(0)
        for n in range(NS - 1): loads(p, n, 'a')
        gate(1)
        for n in range(NS - 1):
            loads(p, n, 'b'); issued += 2; last[n] = issued
    e = Cap(); hooks(e, -1)
    for t in e.l: p.I(t)
    issued += nvm(e.l)
    tr_lane_bits(p, L, 128, False, 252, 253, 254)
    p.I('s_lshl_b32 s38, s36, 6')
    p.I('v_add_u32 v253, s38, v253')
    p.I(f'v_bfe_u32 v254, v{L}, 3, 1')
    p.I('v_lshlrev_b32 v254, 6, v254')
    p.I('v_xor_b32 v253, v253, v254')
    p.I('v_add_u32 v6, v252, v253')
    p.I('s_lshl_b32 s38, s37, 13')
    p.I('v_add_u32 v6, s38, v6')
    if a_kind == 'tr':
        tr_lane_bits(p, L, 128, True, 252, 253, 254)
        p.I('s_lshl_b32 s42, s35, 6')
        p.I('v_add_u32 v253, s42, v253')
        p.I(f'v_bfe_u32 v254, v{L}, 3, 1')
        p.I('v_lshlrev_b32 v254, 6, v254')
        p.I('v_xor_b32 v253, v253, v254')
        p.I('v_add_u32 v7, v252, v253')
        p.I('v_add_u32 v7, s38, v7')
        nA = 1
    else:
        pi_row(p, L, 252, 253)
        p.I('s_lshl_b32 s42, s35, 5')
        p.I('v_add_u32 v252, s42, v252')
        p.I('v_and_b32 v253, 15, v252')
        p.I(f'v_lshrrev_b32 v254, 5, v{L}')
        p.I('v_xor_b32 v253, v253, v254')
        p.I('s_lshl_b32 s42, s37, 3')
        p.I('v_xor_b32 v253, s42, v253')
        p.I('v_lshlrev_b32 v253, 4, v253')
        p.I('v_lshl_add_u32 v252, v252, 8, v253')
        for kq in range(4):
            p.I(f'v_xor_b32 v{7+kq}, {32*kq}, v252')
        nA = 4
    BUF = [128, 160]
    def mfmas(n):
        b = BUF[n % 2]
        r = []
        for kq in range(4):
            c = '0' if (n == 0 and kq == 0) else vr(ACC, 16)
            r.append(f'{MFMA} {vr(ACC,16)}, {vr(b+8*kq,4)}, {vr(b+8*kq+4,4)}, {c}')
        return r
    for n in range(nst):
        sl = (n % NS) * 32768
        p.I(f's_waitcnt vmcnt({issued - last[n]}) lgkmcnt(0)')
        if st: p.I(f'v_writelane_b32 v0, s60, {n}')
        p.I('s_barrier')
        if st: p.I('s_memtime s[60:61]')
        b = BUF[n % 2]
        p.I(f'v_add_u32 v240, {sl}, v6')
        for i in range(nA): p.I(f'v_add_u32 v{241+i}, {sl}, v{7+i}')
        e = Cap()
        for kq in range(4):
            if a_kind == 'tr':
                e.I(f'ds_read_b64_tr_b16 {vr(b+8*kq,2)}, v241 offset:{kq*2048}')
                e.I(f'ds_read_b64_tr_b16 {vr(b+8*kq+2,2)}, v241 offset:{kq*2048+512}')
            else:
                e.I(f'ds_read_b128 {vr(b+8*kq,4)}, v{241+kq}')
            e.I(f'ds_read_b64_tr_b16 {vr(b+8*kq+4,2)}, v240 offset:{16384+kq*2048}')
            e.I(f'ds_read_b64_tr_b16 {vr(b+8*kq+6,2)}, v240 offset:{16384+kq*2048+512}')
        if n + NS - 1 < nst:
            loads(e, n + NS - 1); issued += 4; last[n + NS - 1] = issued
        e2 = Cap(); hooks(e2, n); issued += nvm(e2.l)
        e.l += e2.l
        if n > 0: merge(p, mfmas(n - 1), e.l)
        else:
            for t in e.l: p.I(t)
    for t in mfmas(nst - 1): p.I(t)
    eb = (nst % NS) * 32768
    p.I('s_lshl_b32 s38, s34, 12')
    p.I(f'v_lshlrev_b32 v252, 4, v{L}')
    p.I('v_add_u32 v253, s38, v252')
    p.I(f'v_add_u32 v253, {eb}, v253')
    for q in range(4):
        p.I(f'ds_write_b128 v253, {vr(ACC+4*q,4)} offset:{q*1024}')
    p.I('s_and_b32 s38, s34, 3')
    p.I('s_lshl_b32 s38, s38, 12')
    p.I('s_lshl_b32 s40, s37, 11')
    p.I('s_add_u32 s38, s38, s40')
    p.I('v_add_u32 v253, s38, v252')
    p.I(f'v_add_u32 v253, {eb}, v253')
    p.I('s_waitcnt lgkmcnt(0)')
    p.I('s_barrier')
    p.I(f'ds_read_b128 v[64:67], v253')
    p.I(f'ds_read_b128 v[68:71], v253 offset:1024')
    p.I(f'ds_read_b128 v[72:75], v253 offset:16384')
    p.I(f'ds_read_b128 v[76:79], v253 offset:17408')
    for j in range(8):
        p.I(f'v_add_f32 v{64+j}, v{64+j}, v{72+j}')

def gen_main():
    p = Prog()
    st = STAMPS and STAG in ('main', 'both')
    p.I('s_cmp_ge_u32 s2, 480')
    p.I('s_cbranch_scc1 L_main_done')
    p.I('s_cmp_ge_u32 s2, 256')
    p.I('s_cbranch_scc1 L_gemm1')
    p.I('s_load_dwordx2 s[92:93], s[0:1], 88')
    p.I('s_load_dwordx2 s[58:59], s[0:1], 0')
    p.I('s_load_dwordx4 s[68:71], s[0:1], 8')
    p.I('s_load_dwordx4 s[44:47], s[0:1], 24')
    p.I('s_load_dwordx2 s[4:5], s[0:1], 48')
    p.I('s_load_dwordx2 s[48:49], s[0:1], 96')
    L = 1
    lane_setup(p)
    p.I('s_and_b32 s32, s2, 7')
    p.I('s_lshr_b32 s33, s2, 3')
    p.I('s_waitcnt lgkmcnt(0)')
    srd(p, 8, 48, 49, 2 << 20, WS_H)
    srd(p, 12, 68, 69, 4 << 20)
    srd(p, 72, 70, 71, 4 << 20)
    srd(p, 76, 58, 59, 2 << 20)
    srd(p, 96, 92, 93, 256)
    srd(p, 16, 4, 5, 2048*1792*2)
    srd(p, 20, 44, 45, 4 << 20)
    srd(p, 24, 46, 47, 4 << 20)
    srd(p, 28, 48, 49, 16 << 20, WS_PART)
    p.I('s_lshr_b32 s35, s34, 1')
    p.I('s_and_b32 s36, s34, 1')
    c = LOG2E / math.sqrt(128.0)
    p.I(f's_mov_b32 s50, {f32hex(c)}')
    p.I(f's_mov_b32 s51, {f32hex(8.0)}')
    SLOT = lambda n: 65536 + (n % 3) * 32768
    ACC = 64; QB = 128; S = [160, 192]; NM = 224; STG = 32
    vDq = 2; vDk = 6; vDv = 8; vAq = 9; vXq = 13; vK = 14; vV = 22; vL16 = 26
    vl, va, vmx, vt = 27, 28, 30, 31
    CUR = 240
    p.I(f'v_lshlrev_b32 v{vL16}, 4, v{L}')
    XR = 32
    p.I('s_lshl_b32 s57, s33, 16')
    p.I('s_lshl_b32 s40, s34, 13')
    p.I('s_add_u32 s57, s57, s40')
    p.I(f'v_lshrrev_b32 v252, 3, v{L}')
    p.I(f'v_and_b32 v253, 7, v{L}')
    p.I('v_lshlrev_b32 v254, 4, v253')
    p.I('v_lshl_add_u32 v254, v252, 10, v254')
    for i in range(8):
        p.I(f'buffer_load_dwordx4 {vr(XR+4*i,4)}, v254, s[76:79], s57 offen offset:{128*i}')
    p.I('s_lshl_b32 s56, s34, 3')
    p.I('v_add_u32 v252, s56, v252')
    p.I('v_bfe_u32 v254, v252, 1, 3')
    p.I('v_xor_b32 v253, v253, v254')
    p.I('v_lshlrev_b32 v253, 4, v253')
    p.I('v_lshl_add_u32 v239, v252, 7, v253')
    for i in range(4):
        p.I(f'v_xor_b32 v{vDq+i}, {4*i}, v{L}')
        p.I(f'v_lshlrev_b32 v{vDq+i}, 4, v{vDq+i}')
        if i: p.I(f'v_add_u32 v{vDq+i}, {7168*i}, v{vDq+i}')
    p.I('s_lshl_b32 s39, s36, 3')
    p.I(f'v_lshrrev_b32 v252, 4, v{L}')
    p.I(f'v_and_b32 v253, 15, v{L}')
    for i in range(2):
        p.I(f's_add_u32 s40, s39, {4*i}')
        p.I('v_add_u32 v254, s40, v252')
        p.I('v_xor_b32 v254, v253, v254')
        p.I('v_lshlrev_b32 v254, 4, v254')
        p.I(f'v_lshl_add_u32 v{vDk+i}, v252, 8, v254')
    p.I('v_lshlrev_b32 v254, 2, v252')
    p.I('v_xor_b32 v254, v253, v254')
    p.I('v_lshlrev_b32 v254, 4, v254')
    p.I(f'v_lshl_add_u32 v{vDv}, v252, 8, v254')
    p.I('s_lshl_b32 s41, s34, 12')
    p.I('s_lshl_b32 s42, s34, 11')
    p.I('s_lshl_b32 s52, s34, 15')
    p.I('s_lshl_b32 s40, s32, 10')
    p.I('s_add_u32 s52, s52, s40')
    p.I('s_lshl_b32 s53, s32, 19')
    p.I('s_add_u32 s53, s53, s42')
    p.I(f's_add_u32 s53, s53, {1536*256}')
    p.I('s_lshl_b32 s54, s32, 19')
    p.I('s_add_u32 s54, s54, s41')
    stages = [('Q', n) for n in range(16)] + [('T', n) for n in range(9)] + [('W', n) for n in range(16)]
    def loads(k, e):
        if k >= len(stages): return
        kind, n = stages[k]
        sl = SLOT(k)
        if kind == 'Q':
            e.I(f's_add_u32 m0, s41, {sl}')
            e.I(f's_add_u32 s40, s52, {n*262144}')
            for i in range(4):
                e.I(f'buffer_load_dwordx4 v{vDq+i}, s[20:23], s40 offen offset:{1024*i} lds')
        elif kind == 'W':
            e.I(f's_add_u32 m0, s41, {sl}')
            e.I(f's_add_u32 s40, s54, {n*32768}')
            for i in range(4):
                e.I(f'buffer_load_dwordx4 v{vDq+i}, s[24:27], s40 offen offset:{1024*i} lds')
        else:
            if n < 8:
                e.I(f's_add_u32 m0, s42, {sl}')
                e.I(f's_add_u32 s40, s53, {n*16384}')
                for i in range(2):
                    e.I(f'buffer_load_dwordx4 v{vDk+i}, s[12:15], s40 offen offset:{1024*i} lds')
            if n > 0:
                e.I(f's_add_u32 m0, s42, {sl+16384}')
                e.I(f's_add_u32 s43, s53, {(n-1)*16384}')
                for i in range(2):
                    e.I(f'buffer_load_dwordx4 v{vDv}, s[72:75], s43 offen offset:{1024*i} lds')
    cnt = {'issued': 8}; last = {}
    def track(k, e):
        e0 = Cap(); loads(k, e0)
        cnt['issued'] += nvm(e0.l); last[k] = cnt['issued']
        e.l += e0.l
    def extra(e, e0):
        cnt['issued'] += nvm(e0.l); e.l += e0.l
    if st:
        p.I('s_memtime s[60:61]')
        p.I('s_memrealtime s[62:63]')
    e = Cap()
    track(0, e); track(1, e)
    def warm(e0, what):
        e0.I('s_lshl_b32 s94, s33, 3')
        e0.I('s_add_u32 s94, s94, s34')
        e0.I(f'v_and_b32 v252, 15, v{L}')
        if what == 'wq':
            e0.I('v_lshrrev_b32 v253, 3, v252')
            e0.I('v_and_b32 v254, 7, v252')
            e0.I('v_lshlrev_b32 v254, 7, v254')
            e0.I('v_lshl_add_u32 v253, v253, 13, v254')
            e0.I('s_lshl_b32 s94, s94, 14')
            e0.I('s_lshl_b32 s95, s32, 10')
            e0.I('s_add_u32 s94, s94, s95')
            e0.I('buffer_load_dword v248, v253, s[20:23], s94 offen')
        elif what == 'kv':
            e0.I('v_lshlrev_b32 v253, 7, v252')
            e0.I('v_and_b32 v253, 0x180, v253')
            e0.I('s_lshl_b32 s95, s32, 19')
            e0.I('s_lshl_b32 s94, s94, 9')
            e0.I('s_add_u32 s94, s94, s95')
            e0.I(f's_add_u32 s94, s94, {1536*256}')
            e0.I('buffer_load_dword v249, v253, s[12:15], s94 offen')
            e0.I('buffer_load_dword v250, v253, s[72:75], s94 offen')
        else:
            e0.I('v_lshlrev_b32 v253, 7, v252')
            e0.I('s_lshl_b32 s95, s32, 19')
            e0.I('s_lshl_b32 s94, s94, 11')
            e0.I('s_add_u32 s94, s94, s95')
            e0.I('buffer_load_dword v255, v253, s[24:27], s94 offen')
    e0 = Cap(); warm(e0, 'wq'); warm(e0, 'kv')
    extra(e, e0)
    for t in e.l: p.I(t)
    tr_lane_bits(p, L, 1024, True, 252, 253, 254)
    p.I(f'v_bfe_u32 v254, v{L}, 2, 2')
    p.I('v_lshlrev_b32 v254, 6, v254')
    p.I('s_lshl_b32 s40, s35, 8')
    p.I('v_add_u32 v255, s40, v253')
    p.I('v_add_u32 v255, v255, v252')
    p.I('v_add_u32 v255, v255, v254')
    for t in range(4):
        p.I(f'v_xor_b32 v{vAq+t}, {64*t}, v255')
    p.I(f'v_and_b32 v252, 31, v{L}')
    p.I(f'v_lshrrev_b32 v253, 5, v{L}')
    p.I('v_bfe_u32 v254, v252, 1, 3')
    p.I('v_xor_b32 v254, v254, v253')
    p.I('v_lshlrev_b32 v254, 4, v254')
    p.I('v_lshl_add_u32 v254, v252, 7, v254')
    p.I('s_lshl_b32 s40, s36, 12')
    p.I(f'v_add_u32 v{vXq}, s40, v254')
    pi_row(p, L, 252, 254)
    p.I('v_and_b32 v254, 15, v252')
    p.I('v_xor_b32 v254, v254, v253')
    p.I('v_lshlrev_b32 v254, 4, v254')
    p.I('v_lshl_add_u32 v254, v252, 8, v254')
    for k in range(8):
        p.I(f'v_xor_b32 v{vK+k}, {32*k}, v254')
    tr_lane_bits(p, L, 256, True, 252, 253, 254)
    p.I(f'v_bfe_u32 v254, v{L}, 2, 2')
    p.I('v_lshlrev_b32 v254, 6, v254')
    p.I('v_add_u32 v255, v252, v253')
    p.I('v_add_u32 v255, v255, v254')
    for t in range(4):
        p.I(f'v_xor_b32 v{vV+t}, {64*t}, v255')
    p.I('s_mov_b32 s88, 0xffff0000')
    p.I(f's_mov_b32 s89, {f32hex(1.0/512)}')
    p.I(f's_mov_b32 s90, {f32hex(1e-5)}')
    def pr(a): return f'v[{a}:{a+1}]'
    def rbf(e, v):
        e.I(f'v_cvt_pk_bf16_f32 v{v}, v{v}, v{v}')
        e.I(f'v_lshlrev_b32 v{v}, 16, v{v}')
    def stats(e, A, B):
        e.I(f'v_mul_f32 v{B}, s89, v{B}')
        rbf(e, A); rbf(e, B)
        e.I(f'v_add_f32 v{B}, s90, v{B}'); rbf(e, B)
        e.I(f'v_sqrt_f32 v{B}, v{B}'); rbf(e, B)
        e.I(f'v_rcp_f32 v{B}, v{B}')
    E = 64; Dd = 128; A = 192; B = 194; P0 = 196; P1 = 198
    def red8(v):
        for mod in ('quad_perm:[1,0,3,2]', 'quad_perm:[2,3,0,1]', 'row_half_mirror'):
            p.I(f'v_add_f32_dpp v{v}, v{v}, v{v} {mod} row_mask:0xf bank_mask:0xf')
    for i in range(32):
        p.I(f'v_lshlrev_b32 v{E+2*i}, 16, v{XR+i}')
        p.I(f'v_and_b32 v{E+2*i+1}, s88, v{XR+i}')
    p.I(f'v_pk_add_f32 {pr(P0)}, {pr(E)}, {pr(E+2)}')
    p.I(f'v_pk_add_f32 {pr(P1)}, {pr(E+4)}, {pr(E+6)}')
    for i in range(4, 32, 2):
        p.I(f'v_pk_add_f32 {pr(P0)}, {pr(P0)}, {pr(E+2*i)}')
        p.I(f'v_pk_add_f32 {pr(P1)}, {pr(P1)}, {pr(E+2*i+2)}')
    p.I(f'v_pk_add_f32 {pr(P0)}, {pr(P0)}, {pr(P1)}')
    p.I(f'v_add_f32 v{A}, v{P0}, v{P0+1}')
    red8(A)
    p.I(f'v_mul_f32 v{A}, s89, v{A}')
    for i in range(32): p.I(f'v_pk_add_f32 {pr(Dd+2*i)}, {pr(E+2*i)}, {pr(A)} op_sel_hi:[1,0] neg_lo:[0,1] neg_hi:[0,1]')
    p.I(f'v_pk_mul_f32 {pr(P0)}, {pr(Dd)}, {pr(Dd)}')
    p.I(f'v_pk_mul_f32 {pr(P1)}, {pr(Dd+2)}, {pr(Dd+2)}')
    for i in range(2, 32, 2):
        p.I(f'v_pk_fma_f32 {pr(P0)}, {pr(Dd+2*i)}, {pr(Dd+2*i)}, {pr(P0)}')
        p.I(f'v_pk_fma_f32 {pr(P1)}, {pr(Dd+2*i+2)}, {pr(Dd+2*i+2)}, {pr(P1)}')
    p.I(f'v_pk_add_f32 {pr(P0)}, {pr(P0)}, {pr(P1)}')
    p.I(f'v_add_f32 v{B}, v{P0}, v{P0+1}')
    red8(B)
    stats(p, A, B)
    for i in range(8):
        for j in range(4): p.I(f'v_pk_add_f32 {pr(Dd+8*i+2*j)}, {pr(E+8*i+2*j)}, {pr(A)} op_sel_hi:[1,0] neg_lo:[0,1] neg_hi:[0,1]')
        for j in range(4): p.I(f'v_cvt_pk_bf16_f32 v{E+8*i+j}, v{Dd+8*i+2*j}, v{Dd+8*i+2*j+1}')
        for j in range(4):
            p.I(f'v_lshlrev_b32 v{Dd+8*i+2*j}, 16, v{E+8*i+j}')
            p.I(f'v_and_b32 v{Dd+8*i+2*j+1}, s88, v{E+8*i+j}')
        for j in range(4): p.I(f'v_pk_mul_f32 {pr(Dd+8*i+2*j)}, {pr(Dd+8*i+2*j)}, {pr(B)} op_sel_hi:[1,0]')
        for j in range(4): p.I(f'v_cvt_pk_bf16_f32 v{XR+4*i+j}, v{Dd+8*i+2*j}, v{Dd+8*i+2*j+1}')
        p.I(f'ds_write_b128 v239, {vr(XR+4*i,4)} offset:{8192*i}')
    def ln2_code():
        e = Cap()
        E2 = 32; D2 = 40; A2 = 48; B2 = 49; T2 = 50; SRC = 52; DST = 56
        e.I('s_add_u32 s91, s56, s32')
        e.I('s_bfe_u32 s94, s91, 0x30001')
        e.I(f'v_and_b32 v60, 7, v{L}')
        e.I('v_xor_b32 v60, s94, v60')
        e.I('v_lshlrev_b32 v60, 4, v60')
        e.I(f'v_lshrrev_b32 v61, 3, v{L}')
        e.I('v_lshl_add_u32 v60, v61, 13, v60')
        e.I('s_lshl_b32 s94, s91, 7')
        e.I('v_add_u32 v60, s94, v60')
        e.I(f'ds_read_b128 {vr(SRC,4)}, v60')
        for i in range(4):
            e.I(f'v_lshlrev_b32 v{E2+2*i}, 16, v{SRC+i}')
            e.I(f'v_and_b32 v{E2+2*i+1}, s88, v{SRC+i}')
        e.I(f'v_add_f32 v{A2}, v{E2}, v{E2+1}')
        for i in range(2, 8): e.I(f'v_add_f32 v{A2}, v{A2}, v{E2+i}')
        allreduce(e, 'v_add_f32', A2, T2)
        e.I(f'v_mul_f32 v{A2}, s89, v{A2}')
        for i in range(8): e.I(f'v_sub_f32 v{D2+i}, v{E2+i}, v{A2}')
        e.I(f'v_mul_f32 v{B2}, v{D2}, v{D2}')
        for i in range(1, 8): e.I(f'v_fmac_f32 v{B2}, v{D2+i}, v{D2+i}')
        allreduce(e, 'v_add_f32', B2, T2)
        stats(e, A2, B2)
        for i in range(8): e.I(f'v_sub_f32 v{D2+i}, v{E2+i}, v{A2}')
        for i in range(4): e.I(f'v_cvt_pk_bf16_f32 v{E2+i}, v{D2+2*i}, v{D2+2*i+1}')
        for i in range(4):
            e.I(f'v_lshlrev_b32 v{D2+2*i}, 16, v{E2+i}')
            e.I(f'v_and_b32 v{D2+2*i+1}, s88, v{E2+i}')
        for i in range(8): e.I(f'v_mul_f32 v{D2+i}, v{D2+i}, v{B2}')
        for i in range(4): e.I(f'v_cvt_pk_bf16_f32 v{DST+i}, v{D2+2*i}, v{D2+2*i+1}')
        e.I('s_lshl_b32 s94, s32, 10')
        e.I('s_add_u32 s94, s94, s57')
        e.I(f'buffer_store_dwordx4 {vr(DST,4)}, v{vL16}, s[8:11], s94 offen sc1')
        return e.l
    LN2 = ln2_code()
    LN2_ST = [1, 2, 3, 4]
    HPUB = 7

    QBUF = [128, 168]
    WBUF = [128, 160]
    def top(k):
        p.I(f's_waitcnt vmcnt({cnt["issued"] - last[k]}) lgkmcnt(0)')
        if st: p.I(f'v_writelane_b32 v0, s60, {k}')
        p.I('s_barrier')
        if st: p.I('s_memtime s[60:61]')
    def q_reads(k, n, e):
        b = QBUF[n % 2]; sl = SLOT(k)
        for t in range(4): p.I(f'v_add_u32 v{CUR+t}, {sl}, v{vAq+t}')
        for kk in range(2): p.I(f'v_xor_b32 v{CUR+4+kk}, {(4*(n%2)+2*kk)*16}, v{vXq}')
        for kk in range(2):
            e.I(f'ds_read_b128 {vr(b+4*kk,4)}, v{CUR+4+kk} offset:{(n//2)*8192}')
            for t in range(4):
                a = b + 8 + 16*kk + 4*t
                e.I(f'ds_read_b64_tr_b16 {vr(a,2)}, v{CUR+t} offset:{kk*16384}')
                e.I(f'ds_read_b64_tr_b16 {vr(a+2,2)}, v{CUR+t} offset:{kk*16384+4096}')
    def q_mfmas(n):
        b = QBUF[n % 2]
        r = []
        for kk in range(2):
            for t in range(4):
                cc = '0' if (n == 0 and kk == 0) else vr(ACC+16*t, 16)
                r.append(f'{MFMA} {vr(ACC+16*t,16)}, {vr(b+8+16*kk+4*t,4)}, {vr(b+4*kk,4)}, {cc}')
        return r
    vAw = 9; vXw = 11
    def w_setup():
        for i in range(4):
            p.I(f'v_xor_b32 v{vDq+i}, {4*i}, v{L}')
            p.I(f'v_lshlrev_b32 v{vDq+i}, 4, v{vDq+i}')
    def w_setup2():
        tr_lane_bits(p, L, 1024, True, 252, 253, 254)
        p.I(f'v_bfe_u32 v254, v{L}, 2, 2')
        p.I('v_lshlrev_b32 v254, 6, v254')
        p.I('s_lshl_b32 s40, s34, 7')
        p.I('v_add_u32 v253, s40, v253')
        for ta in range(2):
            p.I(f'v_add_u32 v255, {64*ta}, v253')
            p.I('v_xor_b32 v255, v255, v254')
            p.I(f'v_add_u32 v{vAw+ta}, v255, v252')
        p.I('s_lshl_b32 s40, s36, 12')
        p.I(f'v_subrev_u32 v{vXw}, s40, v{vXq}')
    def w_reads(k, n, e):
        b = WBUF[n % 2]; sl = SLOT(k)
        for ta in range(2): p.I(f'v_add_u32 v{CUR+ta}, {sl}, v{vAw+ta}')
        for kk in range(2): p.I(f'v_xor_b32 v{CUR+4+kk}, {(4*(n%2)+2*kk)*16}, v{vXw}')
        for kk in range(2):
            for tb in range(2):
                e.I(f'ds_read_b128 {vr(b+16*kk+4*tb,4)}, v{CUR+4+kk} offset:{(n//2)*8192 + tb*4096}')
            for ta in range(2):
                a = b + 16*kk + 8 + 4*ta
                e.I(f'ds_read_b64_tr_b16 {vr(a,2)}, v{CUR+ta} offset:{kk*16384}')
                e.I(f'ds_read_b64_tr_b16 {vr(a+2,2)}, v{CUR+ta} offset:{kk*16384+4096}')
    def w_mfmas(n):
        b = WBUF[n % 2]
        r = []
        for kk in range(2):
            for ta in range(2):
                for tb in range(2):
                    d = ACC + 16*(2*ta+tb)
                    cc = '0' if (n == 0 and kk == 0) else vr(d, 16)
                    r.append(f'{MFMA} {vr(d,16)}, {vr(b+16*kk+8+4*ta,4)}, {vr(b+16*kk+4*tb,4)}, {cc}')
        return r
    def g1_warm(e):
        e.I('s_lshl_b32 s40, s33, 3')
        e.I('s_add_u32 s40, s40, s34')
        e.I(f'v_lshrrev_b32 v252, 2, v{L}')
        e.I(f'v_and_b32 v252, 7, v252')
        e.I('s_mov_b32 s43, 3584')
        e.I('v_mul_lo_u32 v252, v252, s43')
        e.I(f'v_and_b32 v253, 3, v{L}')
        e.I('v_lshlrev_b32 v253, 3, v253')
        e.I('v_add_u32 v253, s32, v253')
        e.I('s_lshr_b32 s55, s32, 1')
        e.I('s_add_u32 s55, s55, 24')
        e.I('v_min_u32 v253, s55, v253')
        e.I('v_lshl_add_u32 v252, v253, 7, v252')
        e.I(f's_mul_i32 s43, s40, {8*3584}')
        e.I('buffer_load_dword v254, v252, s[16:19], s43 offen')

    fixups = []
    def maxtree(Sc):
        r = [f'v_max3_f32 v{vmx}, v{Sc}, v{Sc+1}, v{Sc+2}']
        for q in range(3, 31, 2): r.append(f'v_max3_f32 v{vmx}, v{vmx}, v{Sc+q}, v{Sc+q+1}')
        r.append(f'v_max_f32 v{vmx}, v{vmx}, v{Sc+31}')
        return r
    def t_stage(k, n):
        sl = SLOT(k)
        M = []
        V = []
        if n < 8:
            for kq in range(8): p.I(f'v_add_u32 v{CUR+kq}, {sl}, v{vK+kq}')
        if n > 0:
            for t in range(4): p.I(f'v_add_u32 v{CUR+8+t}, {sl}, v{vV+t}')
        req_pv = [0]*4
        f = 0
        if n < 8:
            Sn = S[n % 2]
            for a in range(2):
                for kq in range(8):
                    stg = STG + 4*(f % 8)
                    cc = ('0' if n == 0 else vr(NM, 16)) if kq == 0 else vr(Sn+16*a, 16)
                    M.append([[f'ds_read_b128 {vr(stg,4)}, v{CUR+kq} offset:{a*8192}'],
                              f'{MFMA} {vr(Sn+16*a,16)}, {vr(stg,4)}, {vr(QB+4*kq,4)}, {cc}', -1])
                    f += 1
        if n > 0:
            Sc = S[(n - 1) % 2]
            for jj in range(4):
                for t in range(4):
                    stg = STG + 4*(f % 8)
                    cc = '0' if (n == 1 and jj == 0) else vr(ACC+16*t, 16)
                    M.append([[f'ds_read_b64_tr_b16 {vr(stg,2)}, v{CUR+8+t} offset:{16384+jj*4096}',
                               f'ds_read_b64_tr_b16 {vr(stg+2,2)}, v{CUR+8+t} offset:{16384+jj*4096+1024}'],
                              f'{MFMA} {vr(ACC+16*t,16)}, {vr(stg,4)}, {vr(Sc+8*jj,4)}, {cc}', jj])
                    f += 1
        D = 6
        for j in range(min(D, len(M))):
            for r in M[j][0]: p.I(r)
        e = Cap()
        if n == 2:
            e0 = Cap(); warm(e0, 'wo'); extra(e, e0)
        if n == 4:
            e0 = Cap()
            e0.I('v_mov_b32 v254, 0')
            e0.I('buffer_load_dword v255, v254, s[96:99], 0 offen sc1')
            extra(e, e0)
        if n == 6:
            p.I('v_readfirstlane_b32 s43, v255')
            p.I('s_cmp_lt_u32 s43, 256')
            p.I('s_cbranch_scc1 L_back_w')
            p.I('s_lshl_b32 s40, s33, 3')
            p.I('s_add_u32 s40, s40, s34')
            p.I(f'v_lshlrev_b32 v253, 7, v{L}')
            p.I('s_lshl_b32 s43, s40, 13')
            p.I('buffer_load_dword v255, v253, s[8:11], s43 offen sc1')
            p.L('L_back_w:')
            e0 = Cap(); g1_warm(e0); extra(e, e0)
        track(k + 2, e)
        V += e.l
        if n > 0:
            if n == 1:
                p.I(f'v_mov_b32 v{vt}, v{vmx}')
                p.I(f'v_permlane32_swap_b32 v{vmx}, v{vt}')
                p.I(f'v_max_f32 v{vmx}, v{vmx}, v{vt}')
                for r in range(16): p.I(f'v_sub_f32 v{NM+r}, 0, v{vmx}')
                p.I(f'v_mov_b32 v{vl}, 0')
                for r in range(32): V.append(f'v_sub_f32 v{Sc+r}, v{Sc+r}, v{vmx}')
            else:
                p.I(f'v_cmp_lt_f32 vcc, s51, v{vmx}')
                p.I(f's_cbranch_vccnz L_fix{n}')
                p.L(f'L_back{n}:')
                fixups.append((n, Sc))
            for jj in range(4):
                r0 = Sc + 8*jj
                for r in range(8): V.append(f'v_exp_f32 v{r0+r}, v{r0+r}')
                for r in range(8): V.append(f'v_add_f32 v{vl}, v{vl}, v{r0+r}')
                for r in range(4): V.append(f'v_cvt_pk_bf16_f32 v{r0+r}, v{r0+2*r}, v{r0+2*r+1}')
                req_pv[jj] = len(V)
        nv0 = len(V)
        if n < 8: V += maxtree(S[n % 2])
        vpos = 0
        nm = len(M)
        for j in range(nm):
            need = req_pv[M[j][2]] if M[j][2] >= 0 else 0
            while vpos < need:
                p.I(V[vpos]); vpos += 1
            p.I(M[j][1])
            if j + D < nm:
                for r in M[j+D][0]: p.I(r)
            target = -(-(j+1) * len(V) // nm)
            if j < 17: target = min(target, nv0)
            while vpos < target:
                p.I(V[vpos]); vpos += 1
        while vpos < len(V):
            p.I(V[vpos]); vpos += 1

    for k, (kind, n) in enumerate(stages):
        p.C(f'==== stage {k}: {kind}{n}')
        top(k)
        if kind == 'Q':
            e = Cap()
            q_reads(k, n, e)
            track(k + 2, e)
            if n in LN2_ST:
                q = LN2_ST.index(n); per = -(-len(LN2) // len(LN2_ST))
                e0 = Cap(); e0.l = LN2[q*per:(q+1)*per]; extra(e, e0)
            if n > 0: merge(p, q_mfmas(n - 1), e.l)
            else:
                for t in e.l: p.I(t)
            if n == 14: w_setup()
            if n == HPUB:
                p.I('s_cmp_lg_u32 s34, 0')
                p.I('s_cbranch_scc1 L_back_h')
                p.I('v_mov_b32 v252, 0')
                p.I('v_mov_b32 v253, 1')
                p.I('s_mov_b64 exec, 1')
                p.I('buffer_atomic_add v253, v252, s[96:99], 0 offen sc1')
                p.I('s_mov_b64 exec, -1')
                p.L('L_back_h:')
        elif kind == 'T':
            if n == 0:
                if PRIO:
                    p.I('s_cmp_lt_u32 s34, 4')
                    p.I('s_cbranch_scc1 L_back_pr')
                    p.I('s_setprio 1')
                    p.L('L_back_pr:')
                for t in q_mfmas(15): p.I(t)
                w_setup2()
                for r in range(64): p.I(f'v_mul_f32 v{ACC+r}, s50, v{ACC+r}')
                for t in range(4):
                    for tp in range(2):
                        for d in range(4):
                            r = ACC + 16*t + 8*tp + 2*d
                            p.I(f'v_cvt_pk_bf16_f32 v{QB+4*(2*t+tp)+d}, v{r}, v{r+1}')
            t_stage(k, n)
            if n == 8:
                p.I(f'v_mov_b32 v{vt}, v{vl}')
                p.I(f'v_permlane32_swap_b32 v{vl}, v{vt}')
                p.I(f'v_add_f32 v{vl}, v{vl}, v{vt}')
                p.I(f'v_rcp_f32 v{vl}, v{vl}')
                p.I('s_lshl_b32 s40, s35, 14')
                p.I(f'v_add_u32 v252, s40, v{vXq}')
                for t in range(4):
                    for tp in range(2):
                        r = ACC + 16*t + 8*tp
                        o = 128 + 4*(2*t+tp)
                        for j in range(8): p.I(f'v_mul_f32 v{r+j}, v{r+j}, v{vl}')
                        for d in range(4): p.I(f'v_cvt_pk_bf16_f32 v{o+d}, v{r+2*d}, v{r+2*d+1}')
                        p.I(f'v_xor_b32 v{CUR+2*t+tp}, {(4*(t%2)+2*tp)*16}, v252')
                        p.I(f'ds_write_b128 v{CUR+2*t+tp}, {vr(o,4)} offset:{(t//2)*8192}')
        else:
            e = Cap()
            w_reads(k, n, e)
            track(k + 2, e)
            if n > 0: merge(p, w_mfmas(n - 1), e.l)
            else:
                for t in e.l: p.I(t)
    for t in w_mfmas(15): p.I(t)
    p.I('s_lshl_b32 s40, s32, 21')
    p.I('s_lshl_b32 s43, s33, 16')
    p.I('s_add_u32 s40, s40, s43')
    p.I('s_add_u32 s40, s40, s41')
    p.I('s_add_u32 s43, s40, 32768')
    for ta in range(2):
        for tb in range(2):
            for tp in range(2):
                r = ACC + 16*(2*ta+tb) + 8*tp
                o = 128 + 4*(4*ta+2*tb+tp)
                for d in range(4): p.I(f'v_cvt_pk_bf16_f32 v{o+d}, v{r+2*d}, v{r+2*d+1}')
                p.I(f'buffer_store_dwordx4 {vr(o,4)}, v{vL16}, s[28:31], s{43 if tb else 40} offen offset:{(4*ta+2*tp)*512}{PART_SC}')
    if st: stamp_tail(p, 41)
    p.I('s_endpgm')
    for n, Sc in fixups:
        p.L(f'L_fix{n}:')
        p.I('s_nop 15')
        p.I(f'v_mov_b32 v{vt}, v{vmx}')
        p.I(f'v_permlane32_swap_b32 v{vmx}, v{vt}')
        p.I(f'v_max3_f32 v{vmx}, v{vmx}, v{vt}, 0')
        p.I(f'v_sub_f32 v{va}, 0, v{vmx}')
        p.I(f'v_exp_f32 v{va}, v{va}')
        for r in range(32): p.I(f'v_sub_f32 v{Sc+r}, v{Sc+r}, v{vmx}')
        for r in range(16): p.I(f'v_sub_f32 v{NM+r}, v{NM+r}, v{vmx}')
        p.I(f'v_mul_f32 v{vl}, v{vl}, v{va}')
        for r in range(64): p.I(f'v_mul_f32 v{ACC+r}, v{ACC+r}, v{va}')
        p.I('s_nop 3')
        p.I(f's_branch L_back{n}')

    p.L('L_gemm1:')
    p.I('s_sub_u32 s3, s2, 256')
    p.I('s_cmp_ge_u32 s3, 224')
    p.I('s_cbranch_scc1 L_main_done')
    p.I('s_and_b32 s40, s3, 7')
    p.I('s_lshr_b32 s41, s3, 3')
    p.I('s_and_b32 s32, s41, 7')
    p.I('s_and_b32 s33, s41, 24')
    p.I('s_add_u32 s33, s33, s40')
    p.I('s_lshr_b32 s42, s40, 1')
    p.I('s_add_u32 s42, s42, 24')
    p.I('s_and_b32 s43, s40, 1')
    p.I('s_lshl_b32 s43, s43, 2')
    p.I('s_add_u32 s43, s43, s32')
    p.I('s_cmp_ge_u32 s41, 24')
    p.I('s_cselect_b32 s33, s42, s33')
    p.I('s_cselect_b32 s32, s43, s32')
    p.I('s_load_dwordx4 s[4:7], s[0:1], 48')
    p.I('s_load_dwordx2 s[50:51], s[0:1], 64')
    p.I('s_load_dwordx4 s[92:95], s[0:1], 88')
    lane_setup(p)
    p.I('s_waitcnt lgkmcnt(0)')
    p.I('s_mov_b32 s48, s94')
    p.I('s_mov_b32 s49, s95')
    srd(p, 96, 92, 93, 256)
    srd(p, 8, 4, 5, 2048*1792*2)
    srd(p, 12, 48, 49, 2 << 20, WS_H)
    srd(p, 16, 6, 7, 1792*2)
    srd(p, 20, 48, 49, U_BYTES, WS_U)
    srd(p, 24, 50, 51, 1792*2048*2)
    p.I(f's_mul_i32 s44, s34, {16*3584}')
    p.I('s_lshl_b32 s40, s33, 7')
    p.I('s_add_u32 s44, s44, s40')
    p.I('s_lshl_b32 s45, s34, 14')
    p.I('s_lshl_b32 s40, s32, 7')
    p.I('s_add_u32 s45, s45, s40')
    def g1_hooks(e, n):
        if n == -1:
            e.I('s_lshl_b32 s40, s33, 7')
            e.I('s_lshl_b32 s41, s35, 6')
            e.I('s_add_u32 s40, s40, s41')
            e.I('s_lshl_b32 s41, s37, 5')
            e.I('s_add_u32 s46, s40, s41')
            e.I('v_lshrrev_b32 v252, 5, v1')
            e.I('v_lshlrev_b32 v20, 4, v252')
            e.I('buffer_load_dwordx4 v[16:19], v20, s[16:19], s46 offen')
        if n == 15:
            e.I('s_lshr_b32 s42, s3, 3')
            e.I('s_lshl_b32 s42, s42, 3')
            e.I('s_add_u32 s42, s42, s34')
            e.I('s_lshl_b32 s42, s42, 15')
            e.I('s_and_b32 s43, s3, 3')
            e.I('s_lshl_b32 s43, s43, 10')
            e.I('s_add_u32 s42, s42, s43')
            e.I('v_lshrrev_b32 v252, 3, v1')
            e.I('v_and_b32 v253, 7, v1')
            e.I('v_lshlrev_b32 v253, 7, v253')
            e.I('v_lshl_add_u32 v252, v252, 12, v253')
            e.I('buffer_load_dword v22, v252, s[24:27], s42 offen')
    def g1_gate(ph):
        if ph == 0:
            p.I('v_mov_b32 v24, 0')
            p.I('buffer_load_dword v25, v24, s[96:99], 0 offen sc1')
        else:
            p.I('s_waitcnt vmcnt(8)')
            p.L('L_g1_poll:')
            p.I('v_readfirstlane_b32 s40, v25')
            p.I('s_cmp_ge_u32 s40, 256')
            p.I('s_cbranch_scc1 L_g1_go')
            p.I('s_sleep 8')
            p.I('buffer_load_dword v25, v24, s[96:99], 0 offen sc1')
            p.I('s_waitcnt vmcnt(0)')
            p.I('s_branch L_g1_poll')
            p.L('L_g1_go:')
    gemm64(p, 'g1', 16, 'tr', 8, 12, 3584, 1024, 44, 45, 128*3584, 128*1024, g1_hooks, g1_gate, ' sc1')
    p.I('s_mov_b32 s40, 0xffff0000')
    k0 = math.sqrt(2.0/math.pi)
    p.I(f's_mov_b32 s41, {f32hex(-2.0*k0*LOG2E)}')
    p.I(f's_mov_b32 s42, {f32hex(-2.0*k0*LOG2E*0.044715)}')
    for i in range(4):
        p.I(f'v_lshlrev_b32 v{72+2*i}, 16, v{16+i}')
        p.I(f'v_and_b32 v{72+2*i+1}, s40, v{16+i}')
    for j in range(8): p.I(f'v_add_f32 v{64+j}, v{64+j}, v{72+j}')
    for j in range(8): p.I(f'v_mul_f32 v{72+j}, v{64+j}, v{64+j}')
    p.I('v_mov_b32 v21, s41')
    for j in range(8): p.I(f'v_fma_f32 v{72+j}, v{72+j}, s42, v21')
    for j in range(8): p.I(f'v_mul_f32 v{72+j}, v{72+j}, v{64+j}')
    for j in range(8): p.I(f'v_exp_f32 v{72+j}, v{72+j}')
    for j in range(8): p.I(f'v_add_f32 v{72+j}, 1.0, v{72+j}')
    for j in range(8): p.I(f'v_rcp_f32 v{72+j}, v{72+j}')
    for j in range(8): p.I(f'v_mul_f32 v{64+j}, v{64+j}, v{72+j}')
    for d in range(4): p.I(f'v_cvt_pk_bf16_f32 v{80+d}, v{64+2*d}, v{64+2*d+1}')
    p.I('v_and_b32 v252, 31, v1')
    p.I('s_lshl_b32 s40, s32, 6')
    p.I('s_lshl_b32 s41, s36, 5')
    p.I('s_add_u32 s40, s40, s41')
    p.I('v_add_u32 v252, s40, v252')
    p.I('s_mov_b32 s41, 3584')
    p.I('v_mul_lo_u32 v252, v252, s41')
    p.I('v_add_u32 v252, v252, v20')
    p.I('buffer_store_dwordx4 v[80:83], v252, s[20:23], s46 offen')
    if STAMPS and STAG in ('g1', 'both'): stamp_tail(p, 16)
    p.L('L_main_done:')
    p.I('s_endpgm')
    return p.finalize()

def gen_final():
    p = Prog()
    p.I('s_cmp_ge_u32 s2, 256')
    p.I('s_cbranch_scc1 L_fin_done')
    p.I('s_lshr_b32 s3, s2, 3')
    p.I('s_bfe_u32 s32, s2, 0x10002')
    p.I('s_lshl_b32 s32, s32, 2')
    p.I('s_lshr_b32 s33, s3, 3')
    p.I('s_add_u32 s32, s32, s33')
    p.I('s_and_b32 s33, s2, 3')
    p.I('s_lshl_b32 s33, s33, 3')
    p.I('s_and_b32 s40, s3, 7')
    p.I('s_add_u32 s33, s33, s40')
    p.I('s_load_dwordx2 s[4:5], s[0:1], 0')
    p.I('s_load_dwordx4 s[44:47], s[0:1], 64')
    p.I('s_load_dwordx2 s[6:7], s[0:1], 80')
    p.I('s_load_dwordx2 s[48:49], s[0:1], 96')
    lane_setup(p)
    p.I('s_waitcnt lgkmcnt(0)')
    srd(p, 8, 48, 49, U_BYTES, WS_U)
    srd(p, 12, 44, 45, 1792*2048*2)
    srd(p, 16, 46, 47, 2048*2)
    srd(p, 20, 4, 5, 2 << 20)
    srd(p, 24, 6, 7, 2 << 20)
    srd(p, 28, 48, 49, 16 << 20, WS_PART)
    p.I('s_lshl_b32 s40, s32, 6')
    p.I('s_lshl_b32 s41, s34, 3')
    p.I('s_add_u32 s40, s40, s41')
    p.I('s_mul_i32 s52, s40, 3584')
    p.I('s_lshl_b32 s53, s34, 16')
    p.I('s_lshl_b32 s40, s33, 7')
    p.I('s_add_u32 s53, s53, s40')
    def fin_hooks(e, n):
        if n == -1:
            e.I('s_bfe_u32 s40, s2, 0x10002')
            e.I('s_lshl_b32 s40, s40, 8')
            e.I('s_lshl_b32 s41, s3, 3')
            e.I('s_add_u32 s40, s40, s41')
            e.I('s_add_u32 s40, s40, s34')
            e.I('s_mul_i32 s40, s40, 3584')
            e.I('v_min_u32 v252, 27, v1')
            e.I('v_lshlrev_b32 v252, 7, v252')
            e.I('buffer_load_dword v23, v252, s[8:11], s40 offen')
            e.I('v_and_b32 v252, 31, v1')
            e.I('s_lshl_b32 s40, s33, 6')
            e.I('s_lshl_b32 s41, s36, 5')
            e.I('s_add_u32 s55, s40, s41')
            e.I('v_add_u32 v253, s55, v252')
            e.I('v_lshlrev_b32 v24, 1, v253')
            e.I('s_lshl_b32 s41, s32, 7')
            e.I('s_lshl_b32 s42, s35, 6')
            e.I('s_add_u32 s41, s41, s42')
            e.I('s_lshl_b32 s42, s37, 5')
            e.I('s_add_u32 s54, s41, s42')
            e.I('v_lshrrev_b32 v254, 5, v1')
            e.I('v_lshlrev_b32 v254, 4, v254')
            e.I('v_lshl_add_u32 v21, v253, 10, v254')
            e.I('s_lshl_b32 s55, s55, 10')
            e.I('s_lshl_b32 s41, s54, 5')
            e.I('s_add_u32 s55, s55, s41')
            e.I('v_lshlrev_b32 v25, 4, v1')
        if P0 <= n < P0 + 8:
            g = n - P0
            e.I(f's_add_u32 s42, s55, {g << 21}')
            e.I(f'buffer_load_dwordx4 {vr(96+4*g,4)}, v25, s[28:31], s42 offen')
        if n == 1:
            e.I('buffer_load_ushort v20, v24, s[16:19], 0 offen')
            e.I('buffer_load_dwordx4 v[16:19], v21, s[20:23], s54 offen')
    gemm64(p, 'g2', 14, 'row', 8, 12, 3584, 4096, 52, 53, 256, 128*4096, fin_hooks)
    p.I('s_mov_b32 s40, 0xffff0000')
    p.I(f's_mov_b32 s41, {f32hex(-LOG2E)}')
    p.I('v_lshlrev_b32 v20, 16, v20')
    for j in range(8): p.I(f'v_add_f32 v{64+j}, v{64+j}, v20')
    for j in range(8): p.I(f'v_mul_f32 v{72+j}, s41, v{64+j}')
    for j in range(8): p.I(f'v_exp_f32 v{72+j}, v{72+j}')
    for j in range(8): p.I(f'v_add_f32 v{72+j}, 1.0, v{72+j}')
    for j in range(8): p.I(f'v_rcp_f32 v{72+j}, v{72+j}')
    for j in range(8): p.I(f'v_mul_f32 v{64+j}, v{64+j}, v{72+j}')
    for g in range(8):
        for i in range(4):
            if g == 0:
                p.I(f'v_lshlrev_b32 v{72+2*i}, 16, v{96+i}')
                p.I(f'v_and_b32 v{72+2*i+1}, s40, v{96+i}')
            else:
                p.I(f'v_lshlrev_b32 v{80+2*i}, 16, v{96+4*g+i}')
                p.I(f'v_and_b32 v{80+2*i+1}, s40, v{96+4*g+i}')
        if g:
            for j in range(8): p.I(f'v_add_f32 v{72+j}, v{72+j}, v{80+j}')
    for i in range(4):
        p.I(f'v_lshlrev_b32 v{80+2*i}, 16, v{16+i}')
        p.I(f'v_and_b32 v{80+2*i+1}, s40, v{16+i}')
    for j in range(8): p.I(f'v_fma_f32 v{80+j}, v{72+j}, v{64+j}, v{80+j}')
    for d in range(4): p.I(f'v_cvt_pk_bf16_f32 v{88+d}, v{80+2*d}, v{80+2*d+1}')
    p.I('buffer_store_dwordx4 v[88:91], v21, s[24:27], s54 offen')
    if STAMPS and STAG == 'g2': stamp_tail(p, 14)
    p.L('L_fin_done:')
    p.I('s_endpgm')
    return p.finalize()

def kd(name, vgpr, sgpr=102):
    return f""".p2align 6
.amdhsa_kernel {name}
  .amdhsa_next_free_vgpr {vgpr}
  .amdhsa_next_free_sgpr {sgpr}
  .amdhsa_accum_offset {vgpr}
  .amdhsa_group_segment_fixed_size 0
  .amdhsa_kernarg_size 104
  .amdhsa_user_sgpr_count 2
  .amdhsa_user_sgpr_kernarg_segment_ptr 1
  .amdhsa_system_sgpr_workgroup_id_x 1
.end_amdhsa_kernel
"""

def main(path):
    hdr = open('recurrent_scan__sliding_block_cached__mixer_token_mlp__prompt.s.ref').read().split('; Override launch')[0]
    out = [hdr.rstrip('\n')]
    out.append('; @launch kernel=main_kernel grid=(480,1,1) block=(512,1,1) lds=163840')
    out.append('; @launch kernel=final_kernel grid=(256,1,1) block=(512,1,1) lds=163840')
    out.append('.amdgcn_target "amdgcn-amd-amdhsa--gfx950"\n.text')
    for name, body in (('main_kernel', gen_main()), ('final_kernel', gen_final())):
        out.append(f'.globl {name}\n.p2align 8\n.type {name},@function\n{name}:')
        out.append(body)
    out.append('.section .rodata,"a"')
    out.append(kd('main_kernel', 256, 102))
    out.append(kd('final_kernel', 256, 80))
    open(path, 'w').write('\n'.join(out))

if __name__ == '__main__':
    main(sys.argv[1] if len(sys.argv) > 1 else 'recurrent_scan__sliding_block_cached__mixer_token_mlp__prompt.s')
```

```python
import sys, math, os, struct
sys.path.insert(0, 'gen')
from asmgen import Prog

WS_XN = 0
WS_H = 2 << 20
WS_U = 4 << 20
WS_PART = 8 << 20
WS_S = 6 << 20
WS_KF = 24 << 20
WS_VF = 25 << 20
U_BYTES = 512 * 1792 * 2

LOG2E = 1.4426950408889634
G1W = int(os.environ.get('G1W', '4'))
PART_SC = os.environ.get('PART_SC', ' sc1')
STAG = os.environ.get('STAG', 'main')
STAMPS = bool(int(os.environ.get('STAMPS', '0')))
def f32hex(x):
    return '0x%08x' % struct.unpack('<I', struct.pack('<f', x))[0]

def vr(a, n=1):
    return f'v{a}' if n == 1 else f'v[{a}:{a+n-1}]'

def srd(p, d, lo, hi, nbytes, add=0):
    if add:
        p.I(f's_add_u32 s{d}, s{lo}, {add}')
        p.I(f's_addc_u32 s{d+1}, s{hi}, 0')
        p.I(f's_and_b32 s{d+1}, s{d+1}, 0xffff')
    else:
        p.I(f's_mov_b32 s{d}, s{lo}')
        p.I(f's_and_b32 s{d+1}, s{hi}, 0xffff')
    p.I(f's_mov_b32 s{d+2}, {nbytes}')
    p.I(f's_mov_b32 s{d+3}, 0x20000')

def allreduce(p, op, v, t):
    p.I(f'{op}_dpp v{v}, v{v}, v{v} quad_perm:[1,0,3,2] row_mask:0xf bank_mask:0xf')
    p.I(f'{op}_dpp v{v}, v{v}, v{v} quad_perm:[2,3,0,1] row_mask:0xf bank_mask:0xf')
    p.I(f'{op}_dpp v{v}, v{v}, v{v} row_half_mirror row_mask:0xf bank_mask:0xf')
    p.I(f'{op}_dpp v{v}, v{v}, v{v} row_mirror row_mask:0xf bank_mask:0xf')
    p.I(f'v_mov_b32 v{t}, v{v}')
    p.I(f'v_permlane16_swap_b32 v{v}, v{t}')
    p.I(f'{op} v{v}, v{v}, v{t}')
    p.I(f'v_mov_b32 v{t}, v{v}')
    p.I(f'v_permlane32_swap_b32 v{v}, v{t}')
    p.I(f'{op} v{v}, v{v}, v{t}')

def lane_setup(p, lane=1):
    p.I(f'v_and_b32 v{lane}, 63, v0')
    p.I('v_lshrrev_b32 v252, 6, v0')
    p.I('v_readfirstlane_b32 s34, v252')

def tr_lane_bits(p, lane, rowbytes, pi, dst_row, dst_col, t1):
    sh = int(math.log2(rowbytes))
    p.I(f'v_lshrrev_b32 v{dst_row}, 5, v{lane}')
    p.I(f'v_lshlrev_b32 v{dst_row}, 3, v{dst_row}')
    p.I(f'v_bfe_u32 v{t1}, v{lane}, 2, 2')
    p.I(f'v_add_u32 v{dst_row}, v{dst_row}, v{t1}')
    p.I(f'v_lshlrev_b32 v{dst_row}, {sh}, v{dst_row}')
    p.I(f'v_bfe_u32 v{dst_col}, v{lane}, 4, 1')
    p.I(f'v_lshlrev_b32 v{dst_col}, 5, v{dst_col}')
    if pi:
        p.I(f'v_and_b32 v{t1}, 1, v{lane}')
        p.I(f'v_lshl_add_u32 v{dst_col}, v{t1}, 4, v{dst_col}')
        p.I(f'v_bfe_u32 v{t1}, v{lane}, 1, 1')
        p.I(f'v_lshl_add_u32 v{dst_col}, v{t1}, 3, v{dst_col}')
    else:
        p.I(f'v_and_b32 v{t1}, 3, v{lane}')
        p.I(f'v_lshl_add_u32 v{dst_col}, v{t1}, 3, v{dst_col}')

def pi_row(p, src, dst, t1):
    p.I(f'v_and_b32 v{dst}, 19, v{src}')
    p.I(f'v_bfe_u32 v{t1}, v{src}, 2, 1')
    p.I(f'v_lshl_add_u32 v{dst}, v{t1}, 3, v{dst}')
    p.I(f'v_bfe_u32 v{t1}, v{src}, 3, 1')
    p.I(f'v_lshl_add_u32 v{dst}, v{t1}, 2, v{dst}')

MFMA = 'v_mfma_f32_32x32x16_bf16'

class Cap:
    def __init__(self): self.l = []
    def I(self, t): self.l.append(t)

def nvm(lst):
    return sum(1 for t in lst if t.startswith('buffer_'))

def merge(p, mf, fill):
    pos = 0
    n = len(mf)
    for j, m in enumerate(mf):
        p.I(m)
        tgt = -(-(j + 1) * len(fill) // n)
        while pos < tgt:
            p.I(fill[pos]); pos += 1

def stamp_tail(p, n, wsl=48):
    p.I('s_waitcnt lgkmcnt(0)')
    p.I(f'v_writelane_b32 v0, s60, {n}')
    p.I('s_memtime s[60:61]')
    p.I('s_waitcnt vmcnt(0) lgkmcnt(0)')
    p.I(f'v_writelane_b32 v0, s60, {n+1}')
    p.I('v_writelane_b32 v0, s62, 60')
    p.I('s_memrealtime s[62:63]')
    p.I('s_waitcnt vmcnt(0) lgkmcnt(0)')
    p.I('v_writelane_b32 v0, s62, 61')
    srd(p, 64, wsl, wsl+1, 1 << 20, 64 << 20)
    p.I('s_lshl_b32 s40, s2, 11')
    p.I('s_lshl_b32 s43, s34, 8')
    p.I('s_add_u32 s40, s40, s43')
    p.I('v_lshlrev_b32 v252, 2, v1')
    p.I('buffer_store_dword v0, v252, s[64:67], s40 offen')

def gen_prep():
    p = Prog()
    p.I('s_cmp_ge_u32 s2, 832')
    p.I('s_cbranch_scc1 L_ln_done')
    p.I('s_cmp_ge_u32 s2, 576')
    p.I('s_cbranch_scc1 L_vf')
    p.I('s_cmp_ge_u32 s2, 512')
    p.I('s_cbranch_scc1 L_kf')
    p.I('s_load_dwordx2 s[4:5], s[0:1], 0')
    p.I('s_load_dwordx2 s[6:7], s[0:1], 96')
    p.I('s_load_dwordx4 s[20:23], s[0:1], 24')
    p.I('v_lshrrev_b32 v1, 6, v0')
    p.I('v_and_b32 v2, 63, v0')
    p.I('v_readfirstlane_b32 s34, v1')
    p.I('s_lshl_b32 s3, s2, 2')
    p.I('v_add_u32 v1, s3, v1')
    p.I('v_lshlrev_b32 v1, 10, v1')
    p.I('v_lshl_add_u32 v1, v2, 4, v1')
    p.I('s_waitcnt lgkmcnt(0)')
    srd(p, 8, 4, 5, 2 << 20)
    srd(p, 12, 6, 7, 4 << 20)
    p.I('buffer_load_dwordx4 v[8:11], v1, s[8:11], 0 offen')
    srd(p, 24, 20, 21, 4 << 20)
    srd(p, 28, 22, 23, 4 << 20)
    p.I('s_and_b32 s32, s2, 7')
    p.I('s_lshr_b32 s33, s2, 3')
    p.I('s_lshl_b32 s33, s33, 2')
    p.I('s_add_u32 s33, s33, s34')
    p.I('v_and_b32 v4, 15, v2')
    p.I('v_lshrrev_b32 v5, 3, v4')
    p.I('v_and_b32 v6, 7, v4')
    p.I('v_lshlrev_b32 v6, 7, v6')
    p.I('v_lshl_add_u32 v5, v5, 13, v6')
    p.I('s_lshl_b32 s35, s33, 14')
    p.I('s_lshl_b32 s36, s32, 10')
    p.I('s_add_u32 s35, s35, s36')
    p.I('buffer_load_dword v44, v5, s[24:27], s35 offen')
    p.I('v_lshlrev_b32 v5, 7, v4')
    p.I('s_lshl_b32 s35, s33, 11')
    p.I('s_lshl_b32 s36, s32, 19')
    p.I('s_add_u32 s35, s35, s36')
    p.I('buffer_load_dword v45, v5, s[28:31], s35 offen')
    p.I('s_mov_b32 s16, 0xffff0000')
    p.I(f's_mov_b32 s17, {f32hex(1.0/512)}')
    p.I(f's_mov_b32 s18, {f32hex(1e-5)}')
    E = 16
    def unpack(src):
        for i in range(4):
            p.I(f'v_lshlrev_b32 v{E+2*i}, 16, v{src+i}')
            p.I(f'v_and_b32 v{E+2*i+1}, s16, v{src+i}')
    def rb(v):
        p.I(f'v_cvt_pk_bf16_f32 v{v}, v{v}, v{v}')
        p.I(f'v_lshlrev_b32 v{v}, 16, v{v}')
    def ln(dst):
        p.I(f'v_add_f32 v3, v{E}, v{E+1}')
        for i in range(2, 8): p.I(f'v_add_f32 v3, v3, v{E+i}')
        allreduce(p, 'v_add_f32', 3, 4)
        p.I('v_mul_f32 v3, s17, v3')
        for i in range(8): p.I(f'v_sub_f32 v{24+i}, v{E+i}, v3')
        p.I('v_mul_f32 v5, v24, v24')
        for i in range(1, 8): p.I(f'v_fmac_f32 v5, v{24+i}, v{24+i}')
        allreduce(p, 'v_add_f32', 5, 4)
        p.I('v_mul_f32 v5, s17, v5')
        rb(3); rb(5)
        p.I('v_add_f32 v5, s18, v5'); rb(5)
        p.I('v_sqrt_f32 v5, v5'); rb(5)
        p.I('v_rcp_f32 v5, v5')
        for i in range(8): p.I(f'v_sub_f32 v{24+i}, v{E+i}, v3')
        for i in range(4): p.I(f'v_cvt_pk_bf16_f32 v{32+i}, v{24+2*i}, v{24+2*i+1}')
        for i in range(4):
            p.I(f'v_lshlrev_b32 v{24+2*i}, 16, v{32+i}')
            p.I(f'v_and_b32 v{24+2*i+1}, s16, v{32+i}')
        for i in range(8): p.I(f'v_mul_f32 v{24+i}, v{24+i}, v5')
        for i in range(4): p.I(f'v_cvt_pk_bf16_f32 v{dst+i}, v{24+2*i}, v{24+2*i+1}')
    unpack(8)
    ln(36)
    p.I('buffer_store_dwordx4 v[36:39], v1, s[12:15], 0 offen')
    unpack(36)
    ln(40)
    p.I(f's_mov_b32 s19, {WS_H}')
    p.I('buffer_store_dwordx4 v[40:43], v1, s[12:15], s19 offen')
    p.I('s_endpgm')
    p.L('L_kf:')
    p.I('s_load_dwordx2 s[4:5], s[0:1], 8')
    p.I('s_load_dwordx2 s[6:7], s[0:1], 96')
    p.I('s_sub_u32 s3, s2, 512')
    p.I('s_and_b32 s32, s3, 7')
    p.I('s_lshr_b32 s33, s3, 3')
    p.I('v_lshrrev_b32 v1, 4, v0')
    p.I('v_and_b32 v2, 15, v0')
    p.I('s_waitcnt lgkmcnt(0)')
    srd(p, 8, 4, 5, 4 << 20)
    srd(p, 12, 6, 7, 1 << 20, WS_KF)
    p.I('s_lshl_b32 s35, s32, 19')
    p.I('s_lshl_b32 s36, s33, 14')
    p.I('s_add_u32 s35, s35, s36')
    p.I(f's_add_u32 s35, s35, {1536*256}')
    p.I('v_lshlrev_b32 v3, 4, v0')
    for it in range(4):
        p.I(f'buffer_load_dwordx4 v[{8+4*it}:{11+4*it}], v3, s[8:11], s35 offen offset:{0}' if it == 0 else
            f'buffer_load_dwordx4 v[{8+4*it}:{11+4*it}], v{31+it}, s[8:11], s35 offen')
        if it < 3: p.I(f'v_add_u32 v{32+it}, {4096*(it+1)}, v3')
    p.I('s_lshl_b32 s35, s32, 17')
    p.I('s_add_u32 s35, s35, s36')
    p.I('v_lshrrev_b32 v4, 1, v2')
    p.I('v_and_b32 v5, 1, v2')
    p.I('v_lshlrev_b32 v4, 10, v4')
    p.I('v_lshl_add_u32 v4, v5, 9, v4')
    for it in range(4):
        p.I(f'v_add_u32 v6, {16*(it%2)}, v1')
        pi_row(p, 6, 7, 24)
        p.I('v_lshl_add_u32 v7, v7, 4, v4')
        p.I(f'v_add_u32 v{40+it}, {8192*(it//2)}, v7')
        p.I(f'buffer_store_dwordx4 v[{8+4*it}:{11+4*it}], v{40+it}, s[12:15], s35 offen')
    p.I('s_endpgm')
    p.L('L_vf:')
    p.I('s_load_dwordx2 s[4:5], s[0:1], 16')
    p.I('s_load_dwordx2 s[6:7], s[0:1], 96')
    p.I('s_sub_u32 s3, s2, 576')
    p.I('s_and_b32 s32, s3, 7')
    p.I('s_lshr_b32 s33, s3, 3')
    p.I('v_and_b32 v1, 63, v0')
    p.I('v_lshrrev_b32 v2, 6, v0')
    pi_row(p, 1, 3, 4)
    p.I('v_lshl_add_u32 v3, v2, 5, v3')
    p.I('v_lshlrev_b32 v3, 1, v3')
    p.I('v_lshrrev_b32 v4, 5, v1')
    p.I('v_lshl_add_u32 v3, v4, 11, v3')
    p.I('s_waitcnt lgkmcnt(0)')
    srd(p, 8, 4, 5, 4 << 20)
    srd(p, 12, 6, 7, 1 << 20, WS_VF)
    p.I('s_lshl_b32 s35, s32, 19')
    p.I('s_lshl_b32 s36, s33, 12')
    p.I('s_add_u32 s35, s35, s36')
    p.I(f's_add_u32 s35, s35, {1536*256}')
    for j in range(8):
        p.I(f'buffer_load_ushort v{16+j}, v3, s[8:11], s35 offen offset:{256*j}')
    p.I('s_lshl_b32 s35, s32, 17')
    p.I('s_add_u32 s35, s35, s36')
    p.I('v_lshlrev_b32 v5, 4, v0')
    for j in range(4):
        p.I(f'v_lshl_or_b32 v{8+j}, v{17+2*j}, 16, v{16+2*j}')
    p.I('buffer_store_dwordx4 v[8:11], v5, s[12:15], s35 offen')
    p.L('L_ln_done:')
    p.I('s_endpgm')
    return p.finalize()

def gemm64(p, tag, nst, a_kind, sA, sB, a_stride, b_stride, s_aoff, s_boff, a_step, b_step, hooks, gate=None, bflag='', between=None):
    NS = 5
    L = 1
    ACC = 64
    st = STAMPS and (tag == STAG or (STAG == 'both' and tag == 'g1'))
    p.I('s_lshr_b32 s37, s34, 2')
    p.I('s_bfe_u32 s35, s34, 0x10001')
    p.I('s_and_b32 s36, s34, 1')
    def dma128(dst0, stride):
        p.I(f'v_lshrrev_b32 v252, 3, v{L}')
        p.I(f'v_and_b32 v253, 7, v{L}')
        p.I(f'v_bfe_u32 v254, v{L}, 4, 1')
        p.I(f'v_lshlrev_b32 v254, 2, v254')
        p.I(f'v_xor_b32 v253, v253, v254')
        p.I(f's_mov_b32 s38, {stride}')
        p.I(f'v_mul_lo_u32 v252, v252, s38')
        p.I(f'v_lshl_add_u32 v{dst0}, v253, 4, v252')
        p.I(f'v_add_u32 v{dst0+1}, {8*stride - 1024}, v{dst0}')
    dma128(2, b_stride)
    if a_kind == 'tr':
        dma128(4, a_stride)
    else:
        p.I(f'v_lshrrev_b32 v252, 4, v{L}')
        p.I('s_and_b32 s38, s34, 1')
        p.I('s_lshl_b32 s38, s38, 3')
        p.I(f'v_and_b32 v253, 15, v{L}')
        p.I(f's_mov_b32 s39, {a_stride}')
        for i in range(2):
            p.I(f'v_add_u32 v254, {4*i}, v252')
            p.I('v_add_u32 v255, s38, v254')
            p.I('v_xor_b32 v255, v253, v255')
            p.I('v_mul_lo_u32 v254, v254, s39')
            p.I(f'v_lshl_add_u32 v{4+i}, v255, 4, v254')
            if i: p.I(f'v_subrev_u32 v{4+i}, {1024*i}, v{4+i}')
    p.I('s_lshl_b32 s39, s34, 11')
    def loads(e, n, parts='ab'):
        sl = (n % NS) * 32768
        if 'a' in parts:
            e.I(f's_add_u32 m0, s39, {sl}')
            e.I(f's_add_u32 s40, s{s_aoff}, {n*a_step}')
            e.I(f'buffer_load_dwordx4 v4, s[{sA}:{sA+3}], s40 offen lds')
            e.I(f'buffer_load_dwordx4 v5, s[{sA}:{sA+3}], s40 offen offset:1024 lds')
        if 'b' in parts:
            e.I(f's_add_u32 m0, s39, {sl+16384}')
            e.I(f's_add_u32 s41, s{s_boff}, {n*b_step}')
            e.I(f'buffer_load_dwordx4 v2, s[{sB}:{sB+3}], s41 offen{bflag} lds')
            e.I(f'buffer_load_dwordx4 v3, s[{sB}:{sB+3}], s41 offen offset:1024{bflag} lds')
    if st:
        p.I('s_memtime s[60:61]')
        p.I('s_memrealtime s[62:63]')
    issued = 0; last = {}
    if gate is None:
        for n in range(NS - 1):
            loads(p, n); issued += 4; last[n] = issued
    else:
        gate(0)
        for n in range(NS - 1): loads(p, n, 'a')
        gate(1)
        for n in range(NS - 1):
            loads(p, n, 'b'); issued += 2; last[n] = issued
    e = Cap(); hooks(e, -1)
    for t in e.l: p.I(t)
    issued += nvm(e.l)
    tr_lane_bits(p, L, 128, False, 252, 253, 254)
    p.I('s_lshl_b32 s38, s36, 6')
    p.I('v_add_u32 v253, s38, v253')
    p.I(f'v_bfe_u32 v254, v{L}, 3, 1')
    p.I('v_lshlrev_b32 v254, 6, v254')
    p.I('v_xor_b32 v253, v253, v254')
    p.I('v_add_u32 v6, v252, v253')
    p.I('s_lshl_b32 s38, s37, 13')
    p.I('v_add_u32 v6, s38, v6')
    if a_kind == 'tr':
        tr_lane_bits(p, L, 128, True, 252, 253, 254)
        p.I('s_lshl_b32 s42, s35, 6')
        p.I('v_add_u32 v253, s42, v253')
        p.I(f'v_bfe_u32 v254, v{L}, 3, 1')
        p.I('v_lshlrev_b32 v254, 6, v254')
        p.I('v_xor_b32 v253, v253, v254')
        p.I('v_add_u32 v7, v252, v253')
        p.I('v_add_u32 v7, s38, v7')
        nA = 1
    else:
        pi_row(p, L, 252, 253)
        p.I('s_lshl_b32 s42, s35, 5')
        p.I('v_add_u32 v252, s42, v252')
        p.I('v_and_b32 v253, 15, v252')
        p.I(f'v_lshrrev_b32 v254, 5, v{L}')
        p.I('v_xor_b32 v253, v253, v254')
        p.I('s_lshl_b32 s42, s37, 3')
        p.I('v_xor_b32 v253, s42, v253')
        p.I('v_lshlrev_b32 v253, 4, v253')
        p.I('v_lshl_add_u32 v252, v252, 8, v253')
        for kq in range(4):
            p.I(f'v_xor_b32 v{7+kq}, {32*kq}, v252')
        nA = 4
    if between is not None: issued += between()
    BUF = [128, 160]
    def mfmas(n):
        b = BUF[n % 2]
        r = []
        for kq in range(4):
            c = '0' if (n == 0 and kq == 0) else vr(ACC, 16)
            r.append(f'{MFMA} {vr(ACC,16)}, {vr(b+8*kq,4)}, {vr(b+8*kq+4,4)}, {c}')
        return r
    for n in range(nst):
        sl = (n % NS) * 32768
        p.I(f's_waitcnt vmcnt({issued - last[n]}) lgkmcnt(0)')
        if st: p.I(f'v_writelane_b32 v0, s60, {n}')
        p.I('s_barrier')
        if st: p.I('s_memtime s[60:61]')
        b = BUF[n % 2]
        p.I(f'v_add_u32 v240, {sl}, v6')
        for i in range(nA): p.I(f'v_add_u32 v{241+i}, {sl}, v{7+i}')
        e = Cap()
        for kq in range(4):
            if a_kind == 'tr':
                e.I(f'ds_read_b64_tr_b16 {vr(b+8*kq,2)}, v241 offset:{kq*2048}')
                e.I(f'ds_read_b64_tr_b16 {vr(b+8*kq+2,2)}, v241 offset:{kq*2048+512}')
            else:
                e.I(f'ds_read_b128 {vr(b+8*kq,4)}, v{241+kq}')
            e.I(f'ds_read_b64_tr_b16 {vr(b+8*kq+4,2)}, v240 offset:{16384+kq*2048}')
            e.I(f'ds_read_b64_tr_b16 {vr(b+8*kq+6,2)}, v240 offset:{16384+kq*2048+512}')
        if n + NS - 1 < nst:
            loads(e, n + NS - 1); issued += 4; last[n + NS - 1] = issued
        e2 = Cap(); hooks(e2, n); issued += nvm(e2.l)
        e.l += e2.l
        if n > 0: merge(p, mfmas(n - 1), e.l)
        else:
            for t in e.l: p.I(t)
    for t in mfmas(nst - 1): p.I(t)
    eb = (nst % NS) * 32768
    p.I('s_lshl_b32 s38, s34, 12')
    p.I(f'v_lshlrev_b32 v252, 4, v{L}')
    p.I('v_add_u32 v253, s38, v252')
    p.I(f'v_add_u32 v253, {eb}, v253')
    for q in range(4):
        p.I(f'ds_write_b128 v253, {vr(ACC+4*q,4)} offset:{q*1024}')
    p.I('s_and_b32 s38, s34, 3')
    p.I('s_lshl_b32 s38, s38, 12')
    p.I('s_lshl_b32 s40, s37, 11')
    p.I('s_add_u32 s38, s38, s40')
    p.I('v_add_u32 v253, s38, v252')
    p.I(f'v_add_u32 v253, {eb}, v253')
    p.I('s_waitcnt lgkmcnt(0)')
    p.I('s_barrier')
    p.I(f'ds_read_b128 v[64:67], v253')
    p.I(f'ds_read_b128 v[68:71], v253 offset:1024')
    p.I(f'ds_read_b128 v[72:75], v253 offset:16384')
    p.I(f'ds_read_b128 v[76:79], v253 offset:17408')
    for j in range(8):
        p.I(f'v_add_f32 v{64+j}, v{64+j}, v{72+j}')

def gen_main():
    p = Prog()
    st = STAMPS and STAG in ('main', 'both')
    p.I('s_cmp_ge_u32 s2, 256')
    p.I('s_cbranch_scc1 L_main_done')
    p.I('s_load_dwordx2 s[92:93], s[0:1], 88')
    p.I('s_load_dwordx2 s[58:59], s[0:1], 0')
    p.I('s_load_dwordx4 s[68:71], s[0:1], 8')
    p.I('s_load_dwordx4 s[44:47], s[0:1], 24')
    p.I('s_load_dwordx4 s[4:7], s[0:1], 48')
    p.I('s_load_dwordx2 s[100:101], s[0:1], 64')
    p.I('s_load_dwordx2 s[48:49], s[0:1], 96')
    L = 1
    lane_setup(p)
    p.I('s_and_b32 s32, s2, 7')
    p.I('s_lshr_b32 s33, s2, 3')
    p.I('s_waitcnt lgkmcnt(0)')
    srd(p, 8, 48, 49, 2 << 20, WS_H)
    srd(p, 12, 68, 69, 4 << 20)
    srd(p, 72, 70, 71, 4 << 20)
    srd(p, 76, 58, 59, 2 << 20)
    srd(p, 96, 92, 93, 256)
    srd(p, 16, 4, 5, 2048*1792*2)
    srd(p, 20, 44, 45, 4 << 20)
    srd(p, 24, 46, 47, 4 << 20)
    srd(p, 28, 48, 49, 16 << 20, WS_PART)
    p.I('s_lshr_b32 s35, s34, 1')
    p.I('s_and_b32 s36, s34, 1')
    c = LOG2E / math.sqrt(128.0)
    p.I(f's_mov_b32 s50, {f32hex(c)}')
    p.I(f's_mov_b32 s51, {f32hex(8.0)}')
    SLOT = lambda n: 65536 + (n % 3) * 32768
    ACC = 64; QB = 128; S = [160, 192]; NM = 224; STG = 32
    vDq = 2; vDk = 6; vDv = 8; vAq = 9; vXq = 13; vK = 14; vV = 22; vL16 = 26
    vl, va, vmx, vt = 27, 28, 30, 31
    CUR = 240
    p.I(f'v_lshlrev_b32 v{vL16}, 4, v{L}')
    XR = 32
    p.I('s_lshl_b32 s57, s33, 16')
    p.I('s_lshl_b32 s40, s34, 13')
    p.I('s_add_u32 s57, s57, s40')
    p.I(f'v_lshrrev_b32 v252, 3, v{L}')
    p.I(f'v_and_b32 v253, 7, v{L}')
    p.I('v_lshlrev_b32 v254, 4, v253')
    p.I('v_lshl_add_u32 v254, v252, 10, v254')
    for i in range(8):
        p.I(f'buffer_load_dwordx4 {vr(XR+4*i,4)}, v254, s[76:79], s57 offen offset:{128*i}')
    p.I('s_lshl_b32 s56, s34, 3')
    p.I('v_add_u32 v252, s56, v252')
    p.I('v_bfe_u32 v254, v252, 1, 3')
    p.I('v_xor_b32 v253, v253, v254')
    p.I('v_lshlrev_b32 v253, 4, v253')
    p.I('v_lshl_add_u32 v239, v252, 7, v253')
    for i in range(4):
        p.I(f'v_xor_b32 v{vDq+i}, {4*i}, v{L}')
        p.I(f'v_lshlrev_b32 v{vDq+i}, 4, v{vDq+i}')
        if i: p.I(f'v_add_u32 v{vDq+i}, {7168*i}, v{vDq+i}')
    p.I('s_lshl_b32 s39, s36, 3')
    p.I(f'v_lshrrev_b32 v252, 4, v{L}')
    p.I(f'v_and_b32 v253, 15, v{L}')
    for i in range(2):
        p.I(f's_add_u32 s40, s39, {4*i}')
        p.I('v_add_u32 v254, s40, v252')
        p.I('v_xor_b32 v254, v253, v254')
        p.I('v_lshlrev_b32 v254, 4, v254')
        p.I(f'v_lshl_add_u32 v{vDk+i}, v252, 8, v254')
    p.I('v_lshlrev_b32 v254, 2, v252')
    p.I('v_xor_b32 v254, v253, v254')
    p.I('v_lshlrev_b32 v254, 4, v254')
    p.I(f'v_lshl_add_u32 v{vDv}, v252, 8, v254')
    p.I('s_lshl_b32 s41, s34, 12')
    p.I('s_lshl_b32 s42, s34, 11')
    p.I('s_lshl_b32 s52, s34, 15')
    p.I('s_lshl_b32 s40, s32, 10')
    p.I('s_add_u32 s52, s52, s40')
    p.I('s_lshl_b32 s53, s32, 19')
    p.I('s_add_u32 s53, s53, s42')
    p.I(f's_add_u32 s53, s53, {1536*256}')
    p.I('s_lshl_b32 s54, s32, 19')
    p.I('s_add_u32 s54, s54, s41')
    stages = [('Q', n) for n in range(16)] + [('T', n) for n in range(9)] + [('W', n) for n in range(16)]
    def loads(k, e):
        if k >= len(stages): return
        kind, n = stages[k]
        sl = SLOT(k)
        if kind == 'Q':
            e.I(f's_add_u32 m0, s41, {sl}')
            e.I(f's_add_u32 s40, s52, {n*262144}')
            for i in range(4):
                e.I(f'buffer_load_dwordx4 v{vDq+i}, s[20:23], s40 offen offset:{1024*i} lds')
        elif kind == 'W':
            e.I(f's_add_u32 m0, s41, {sl}')
            e.I(f's_add_u32 s40, s54, {n*32768}')
            for i in range(4):
                e.I(f'buffer_load_dwordx4 v{vDq+i}, s[24:27], s40 offen offset:{1024*i} lds')
        else:
            if n < 8:
                e.I(f's_add_u32 m0, s42, {sl}')
                e.I(f's_add_u32 s40, s53, {n*16384}')
                for i in range(2):
                    e.I(f'buffer_load_dwordx4 v{vDk+i}, s[12:15], s40 offen offset:{1024*i} lds')
            if n > 0:
                e.I(f's_add_u32 m0, s42, {sl+16384}')
                e.I(f's_add_u32 s43, s53, {(n-1)*16384}')
                for i in range(2):
                    e.I(f'buffer_load_dwordx4 v{vDv}, s[72:75], s43 offen offset:{1024*i} lds')
    cnt = {'issued': 8}; last = {}
    def track(k, e):
        e0 = Cap(); loads(k, e0)
        cnt['issued'] += nvm(e0.l); last[k] = cnt['issued']
        e.l += e0.l
    def extra(e, e0):
        cnt['issued'] += nvm(e0.l); e.l += e0.l
    if st:
        p.I('s_memtime s[60:61]')
        p.I('s_memrealtime s[62:63]')
    e = Cap()
    track(0, e); track(1, e)
    def warm(e0, what):
        e0.I('s_lshl_b32 s94, s33, 3')
        e0.I('s_add_u32 s94, s94, s34')
        e0.I(f'v_and_b32 v252, 15, v{L}')
        if what == 'wq':
            e0.I('v_lshrrev_b32 v253, 3, v252')
            e0.I('v_and_b32 v254, 7, v252')
            e0.I('v_lshlrev_b32 v254, 7, v254')
            e0.I('v_lshl_add_u32 v253, v253, 13, v254')
            e0.I('s_lshl_b32 s94, s94, 14')
            e0.I('s_lshl_b32 s95, s32, 10')
            e0.I('s_add_u32 s94, s94, s95')
            e0.I('buffer_load_dword v248, v253, s[20:23], s94 offen')
        elif what == 'kv':
            e0.I('v_lshlrev_b32 v253, 7, v252')
            e0.I('v_and_b32 v253, 0x180, v253')
            e0.I('s_lshl_b32 s95, s32, 19')
            e0.I('s_lshl_b32 s94, s94, 9')
            e0.I('s_add_u32 s94, s94, s95')
            e0.I(f's_add_u32 s94, s94, {1536*256}')
            e0.I('buffer_load_dword v249, v253, s[12:15], s94 offen')
            e0.I('buffer_load_dword v250, v253, s[72:75], s94 offen')
        else:
            e0.I('v_lshlrev_b32 v253, 7, v252')
            e0.I('s_lshl_b32 s95, s32, 19')
            e0.I('s_lshl_b32 s94, s94, 11')
            e0.I('s_add_u32 s94, s94, s95')
            e0.I('buffer_load_dword v255, v253, s[24:27], s94 offen')
    e0 = Cap(); warm(e0, 'wq'); warm(e0, 'kv')
    extra(e, e0)
    for t in e.l: p.I(t)
    tr_lane_bits(p, L, 1024, True, 252, 253, 254)
    p.I(f'v_bfe_u32 v254, v{L}, 2, 2')
    p.I('v_lshlrev_b32 v254, 6, v254')
    p.I('s_lshl_b32 s40, s35, 8')
    p.I('v_add_u32 v255, s40, v253')
    p.I('v_add_u32 v255, v255, v252')
    p.I('v_add_u32 v255, v255, v254')
    for t in range(4):
        p.I(f'v_xor_b32 v{vAq+t}, {64*t}, v255')
    p.I(f'v_and_b32 v252, 31, v{L}')
    p.I(f'v_lshrrev_b32 v253, 5, v{L}')
    p.I('v_bfe_u32 v254, v252, 1, 3')
    p.I('v_xor_b32 v254, v254, v253')
    p.I('v_lshlrev_b32 v254, 4, v254')
    p.I('v_lshl_add_u32 v254, v252, 7, v254')
    p.I('s_lshl_b32 s40, s36, 12')
    p.I(f'v_add_u32 v{vXq}, s40, v254')
    pi_row(p, L, 252, 254)
    p.I('v_and_b32 v254, 15, v252')
    p.I('v_xor_b32 v254, v254, v253')
    p.I('v_lshlrev_b32 v254, 4, v254')
    p.I('v_lshl_add_u32 v254, v252, 8, v254')
    for k in range(8):
        p.I(f'v_xor_b32 v{vK+k}, {32*k}, v254')
    tr_lane_bits(p, L, 256, True, 252, 253, 254)
    p.I(f'v_bfe_u32 v254, v{L}, 2, 2')
    p.I('v_lshlrev_b32 v254, 6, v254')
    p.I('v_add_u32 v255, v252, v253')
    p.I('v_add_u32 v255, v255, v254')
    for t in range(4):
        p.I(f'v_xor_b32 v{vV+t}, {64*t}, v255')
    p.I('s_mov_b32 s88, 0xffff0000')
    p.I(f's_mov_b32 s89, {f32hex(1.0/512)}')
    p.I(f's_mov_b32 s90, {f32hex(1e-5)}')
    def pr(a): return f'v[{a}:{a+1}]'
    def rbf(e, v):
        e.I(f'v_cvt_pk_bf16_f32 v{v}, v{v}, v{v}')
        e.I(f'v_lshlrev_b32 v{v}, 16, v{v}')
    def stats(e, A, B):
        e.I(f'v_mul_f32 v{B}, s89, v{B}')
        rbf(e, A); rbf(e, B)
        e.I(f'v_add_f32 v{B}, s90, v{B}'); rbf(e, B)
        e.I(f'v_sqrt_f32 v{B}, v{B}'); rbf(e, B)
        e.I(f'v_rcp_f32 v{B}, v{B}')
    E = 64; Dd = 128; A = 192; B = 194; P0 = 196; P1 = 198
    def red8(v):
        for mod in ('quad_perm:[1,0,3,2]', 'quad_perm:[2,3,0,1]', 'row_half_mirror'):
            p.I(f'v_add_f32_dpp v{v}, v{v}, v{v} {mod} row_mask:0xf bank_mask:0xf')
    for i in range(32):
        p.I(f'v_lshlrev_b32 v{E+2*i}, 16, v{XR+i}')
        p.I(f'v_and_b32 v{E+2*i+1}, s88, v{XR+i}')
    p.I(f'v_pk_add_f32 {pr(P0)}, {pr(E)}, {pr(E+2)}')
    p.I(f'v_pk_add_f32 {pr(P1)}, {pr(E+4)}, {pr(E+6)}')
    for i in range(4, 32, 2):
        p.I(f'v_pk_add_f32 {pr(P0)}, {pr(P0)}, {pr(E+2*i)}')
        p.I(f'v_pk_add_f32 {pr(P1)}, {pr(P1)}, {pr(E+2*i+2)}')
    p.I(f'v_pk_add_f32 {pr(P0)}, {pr(P0)}, {pr(P1)}')
    p.I(f'v_add_f32 v{A}, v{P0}, v{P0+1}')
    red8(A)
    p.I(f'v_mul_f32 v{A}, s89, v{A}')
    for i in range(32): p.I(f'v_pk_add_f32 {pr(Dd+2*i)}, {pr(E+2*i)}, {pr(A)} op_sel_hi:[1,0] neg_lo:[0,1] neg_hi:[0,1]')
    p.I(f'v_pk_mul_f32 {pr(P0)}, {pr(Dd)}, {pr(Dd)}')
    p.I(f'v_pk_mul_f32 {pr(P1)}, {pr(Dd+2)}, {pr(Dd+2)}')
    for i in range(2, 32, 2):
        p.I(f'v_pk_fma_f32 {pr(P0)}, {pr(Dd+2*i)}, {pr(Dd+2*i)}, {pr(P0)}')
        p.I(f'v_pk_fma_f32 {pr(P1)}, {pr(Dd+2*i+2)}, {pr(Dd+2*i+2)}, {pr(P1)}')
    p.I(f'v_pk_add_f32 {pr(P0)}, {pr(P0)}, {pr(P1)}')
    p.I(f'v_add_f32 v{B}, v{P0}, v{P0+1}')
    red8(B)
    stats(p, A, B)
    for i in range(8):
        for j in range(4): p.I(f'v_pk_add_f32 {pr(Dd+8*i+2*j)}, {pr(E+8*i+2*j)}, {pr(A)} op_sel_hi:[1,0] neg_lo:[0,1] neg_hi:[0,1]')
        for j in range(4): p.I(f'v_cvt_pk_bf16_f32 v{E+8*i+j}, v{Dd+8*i+2*j}, v{Dd+8*i+2*j+1}')
        for j in range(4):
            p.I(f'v_lshlrev_b32 v{Dd+8*i+2*j}, 16, v{E+8*i+j}')
            p.I(f'v_and_b32 v{Dd+8*i+2*j+1}, s88, v{E+8*i+j}')
        for j in range(4): p.I(f'v_pk_mul_f32 {pr(Dd+8*i+2*j)}, {pr(Dd+8*i+2*j)}, {pr(B)} op_sel_hi:[1,0]')
        for j in range(4): p.I(f'v_cvt_pk_bf16_f32 v{XR+4*i+j}, v{Dd+8*i+2*j}, v{Dd+8*i+2*j+1}')
        p.I(f'ds_write_b128 v239, {vr(XR+4*i,4)} offset:{8192*i}')
    def ln2_code():
        e = Cap()
        E2 = 32; D2 = 40; A2 = 48; B2 = 49; T2 = 50; SRC = 52; DST = 56
        e.I('s_add_u32 s91, s56, s32')
        e.I('s_bfe_u32 s94, s91, 0x30001')
        e.I(f'v_and_b32 v60, 7, v{L}')
        e.I('v_xor_b32 v60, s94, v60')
        e.I('v_lshlrev_b32 v60, 4, v60')
        e.I(f'v_lshrrev_b32 v61, 3, v{L}')
        e.I('v_lshl_add_u32 v60, v61, 13, v60')
        e.I('s_lshl_b32 s94, s91, 7')
        e.I('v_add_u32 v60, s94, v60')
        e.I(f'ds_read_b128 {vr(SRC,4)}, v60')
        for i in range(4):
            e.I(f'v_lshlrev_b32 v{E2+2*i}, 16, v{SRC+i}')
            e.I(f'v_and_b32 v{E2+2*i+1}, s88, v{SRC+i}')
        e.I(f'v_add_f32 v{A2}, v{E2}, v{E2+1}')
        for i in range(2, 8): e.I(f'v_add_f32 v{A2}, v{A2}, v{E2+i}')
        allreduce(e, 'v_add_f32', A2, T2)
        e.I(f'v_mul_f32 v{A2}, s89, v{A2}')
        for i in range(8): e.I(f'v_sub_f32 v{D2+i}, v{E2+i}, v{A2}')
        e.I(f'v_mul_f32 v{B2}, v{D2}, v{D2}')
        for i in range(1, 8): e.I(f'v_fmac_f32 v{B2}, v{D2+i}, v{D2+i}')
        allreduce(e, 'v_add_f32', B2, T2)
        stats(e, A2, B2)
        for i in range(8): e.I(f'v_sub_f32 v{D2+i}, v{E2+i}, v{A2}')
        for i in range(4): e.I(f'v_cvt_pk_bf16_f32 v{E2+i}, v{D2+2*i}, v{D2+2*i+1}')
        for i in range(4):
            e.I(f'v_lshlrev_b32 v{D2+2*i}, 16, v{E2+i}')
            e.I(f'v_and_b32 v{D2+2*i+1}, s88, v{E2+i}')
        for i in range(8): e.I(f'v_mul_f32 v{D2+i}, v{D2+i}, v{B2}')
        for i in range(4): e.I(f'v_cvt_pk_bf16_f32 v{DST+i}, v{D2+2*i}, v{D2+2*i+1}')
        e.I('s_lshl_b32 s94, s32, 10')
        e.I('s_add_u32 s94, s94, s57')
        e.I(f'buffer_store_dwordx4 {vr(DST,4)}, v{vL16}, s[8:11], s94 offen sc1')
        return e.l
    LN2 = ln2_code()
    LN2_ST = [1, 2, 3, 4]
    HPUB = 7

    QBUF = [128, 168]
    WBUF = [128, 160]
    def top(k):
        p.I(f's_waitcnt vmcnt({cnt["issued"] - last[k]}) lgkmcnt(0)')
        if st: p.I(f'v_writelane_b32 v0, s60, {k}')
        p.I('s_barrier')
        if st: p.I('s_memtime s[60:61]')
    def q_reads(k, n, e):
        b = QBUF[n % 2]; sl = SLOT(k)
        for t in range(4): p.I(f'v_add_u32 v{CUR+t}, {sl}, v{vAq+t}')
        for kk in range(2): p.I(f'v_xor_b32 v{CUR+4+kk}, {(4*(n%2)+2*kk)*16}, v{vXq}')
        for kk in range(2):
            e.I(f'ds_read_b128 {vr(b+4*kk,4)}, v{CUR+4+kk} offset:{(n//2)*8192}')
            for t in range(4):
                a = b + 8 + 16*kk + 4*t
                e.I(f'ds_read_b64_tr_b16 {vr(a,2)}, v{CUR+t} offset:{kk*16384}')
                e.I(f'ds_read_b64_tr_b16 {vr(a+2,2)}, v{CUR+t} offset:{kk*16384+4096}')
    def q_mfmas(n):
        b = QBUF[n % 2]
        r = []
        for kk in range(2):
            for t in range(4):
                cc = '0' if (n == 0 and kk == 0) else vr(ACC+16*t, 16)
                r.append(f'{MFMA} {vr(ACC+16*t,16)}, {vr(b+8+16*kk+4*t,4)}, {vr(b+4*kk,4)}, {cc}')
        return r
    vAw = 9; vXw = 11
    def w_setup():
        for i in range(4):
            p.I(f'v_xor_b32 v{vDq+i}, {4*i}, v{L}')
            p.I(f'v_lshlrev_b32 v{vDq+i}, 4, v{vDq+i}')
    def w_setup2():
        tr_lane_bits(p, L, 1024, True, 252, 253, 254)
        p.I(f'v_bfe_u32 v254, v{L}, 2, 2')
        p.I('v_lshlrev_b32 v254, 6, v254')
        p.I('s_lshl_b32 s40, s34, 7')
        p.I('v_add_u32 v253, s40, v253')
        for ta in range(2):
            p.I(f'v_add_u32 v255, {64*ta}, v253')
            p.I('v_xor_b32 v255, v255, v254')
            p.I(f'v_add_u32 v{vAw+ta}, v255, v252')
        p.I('s_lshl_b32 s40, s36, 12')
        p.I(f'v_subrev_u32 v{vXw}, s40, v{vXq}')
    def w_reads(k, n, e):
        b = WBUF[n % 2]; sl = SLOT(k)
        for ta in range(2): p.I(f'v_add_u32 v{CUR+ta}, {sl}, v{vAw+ta}')
        for kk in range(2): p.I(f'v_xor_b32 v{CUR+4+kk}, {(4*(n%2)+2*kk)*16}, v{vXw}')
        for kk in range(2):
            for tb in range(2):
                e.I(f'ds_read_b128 {vr(b+16*kk+4*tb,4)}, v{CUR+4+kk} offset:{(n//2)*8192 + tb*4096}')
            for ta in range(2):
                a = b + 16*kk + 8 + 4*ta
                e.I(f'ds_read_b64_tr_b16 {vr(a,2)}, v{CUR+ta} offset:{kk*16384}')
                e.I(f'ds_read_b64_tr_b16 {vr(a+2,2)}, v{CUR+ta} offset:{kk*16384+4096}')
    def w_mfmas(n):
        b = WBUF[n % 2]
        r = []
        for kk in range(2):
            for ta in range(2):
                for tb in range(2):
                    d = ACC + 16*(2*ta+tb)
                    cc = '0' if (n == 0 and kk == 0) else vr(d, 16)
                    r.append(f'{MFMA} {vr(d,16)}, {vr(b+16*kk+8+4*ta,4)}, {vr(b+16*kk+4*tb,4)}, {cc}')
        return r
    def g1_warm(e):
        e.I('s_lshl_b32 s40, s33, 3')
        e.I('s_add_u32 s40, s40, s34')
        e.I(f'v_lshrrev_b32 v252, 2, v{L}')
        e.I(f'v_and_b32 v252, 7, v252')
        e.I('s_mov_b32 s43, 3584')
        e.I('v_mul_lo_u32 v252, v252, s43')
        e.I(f'v_and_b32 v253, 3, v{L}')
        e.I('v_lshlrev_b32 v253, 3, v253')
        e.I('v_add_u32 v253, s32, v253')
        e.I('s_lshr_b32 s55, s32, 1')
        e.I('s_add_u32 s55, s55, 24')
        e.I('v_min_u32 v253, s55, v253')
        e.I('v_lshl_add_u32 v252, v253, 7, v252')
        e.I(f's_mul_i32 s43, s40, {8*3584}')
        e.I('buffer_load_dword v254, v252, s[16:19], s43 offen')

    fixups = []
    def maxtree(Sc):
        r = [f'v_max3_f32 v{vmx}, v{Sc}, v{Sc+1}, v{Sc+2}']
        for q in range(3, 31, 2): r.append(f'v_max3_f32 v{vmx}, v{vmx}, v{Sc+q}, v{Sc+q+1}')
        r.append(f'v_max_f32 v{vmx}, v{vmx}, v{Sc+31}')
        return r
    def t_stage(k, n):
        sl = SLOT(k)
        M = []
        V = []
        if n < 8:
            for kq in range(8): p.I(f'v_add_u32 v{CUR+kq}, {sl}, v{vK+kq}')
        if n > 0:
            for t in range(4): p.I(f'v_add_u32 v{CUR+8+t}, {sl}, v{vV+t}')
        req_pv = [0]*4
        f = 0
        if n < 8:
            Sn = S[n % 2]
            for a in range(2):
                for kq in range(8):
                    stg = STG + 4*(f % 8)
                    cc = ('0' if n == 0 else vr(NM, 16)) if kq == 0 else vr(Sn+16*a, 16)
                    M.append([[f'ds_read_b128 {vr(stg,4)}, v{CUR+kq} offset:{a*8192}'],
                              f'{MFMA} {vr(Sn+16*a,16)}, {vr(stg,4)}, {vr(QB+4*kq,4)}, {cc}', -1])
                    f += 1
        if n > 0:
            Sc = S[(n - 1) % 2]
            for jj in range(4):
                for t in range(4):
                    stg = STG + 4*(f % 8)
                    cc = '0' if (n == 1 and jj == 0) else vr(ACC+16*t, 16)
                    M.append([[f'ds_read_b64_tr_b16 {vr(stg,2)}, v{CUR+8+t} offset:{16384+jj*4096}',
                               f'ds_read_b64_tr_b16 {vr(stg+2,2)}, v{CUR+8+t} offset:{16384+jj*4096+1024}'],
                              f'{MFMA} {vr(ACC+16*t,16)}, {vr(stg,4)}, {vr(Sc+8*jj,4)}, {cc}', jj])
                    f += 1
        D = 6
        for j in range(min(D, len(M))):
            for r in M[j][0]: p.I(r)
        e = Cap()
        if n == 2:
            e0 = Cap(); warm(e0, 'wo'); extra(e, e0)
        if n == 4:
            e0 = Cap()
            e0.I('v_mov_b32 v254, 0')
            e0.I('buffer_load_dword v255, v254, s[96:99], 0 offen sc1')
            extra(e, e0)
        if n == 6:
            p.I('v_readfirstlane_b32 s43, v255')
            p.I('s_cmp_lt_u32 s43, 256')
            p.I('s_cbranch_scc1 L_back_w')
            p.I('s_lshl_b32 s40, s33, 3')
            p.I('s_add_u32 s40, s40, s34')
            p.I(f'v_lshlrev_b32 v253, 7, v{L}')
            p.I('s_lshl_b32 s43, s40, 13')
            p.I('buffer_load_dword v255, v253, s[8:11], s43 offen sc1')
            p.L('L_back_w:')
            e0 = Cap(); g1_warm(e0); extra(e, e0)
        track(k + 2, e)
        V += e.l
        if n > 0:
            if n == 1:
                p.I(f'v_mov_b32 v{vt}, v{vmx}')
                p.I(f'v_permlane32_swap_b32 v{vmx}, v{vt}')
                p.I(f'v_max_f32 v{vmx}, v{vmx}, v{vt}')
                for r in range(16): p.I(f'v_sub_f32 v{NM+r}, 0, v{vmx}')
                p.I(f'v_mov_b32 v{vl}, 0')
                for r in range(32): V.append(f'v_sub_f32 v{Sc+r}, v{Sc+r}, v{vmx}')
            else:
                p.I(f'v_cmp_lt_f32 vcc, s51, v{vmx}')
                p.I(f's_cbranch_vccnz L_fix{n}')
                p.L(f'L_back{n}:')
                fixups.append((n, Sc))
            for jj in range(4):
                r0 = Sc + 8*jj
                for r in range(8): V.append(f'v_exp_f32 v{r0+r}, v{r0+r}')
                for r in range(8): V.append(f'v_add_f32 v{vl}, v{vl}, v{r0+r}')
                for r in range(4): V.append(f'v_cvt_pk_bf16_f32 v{r0+r}, v{r0+2*r}, v{r0+2*r+1}')
                req_pv[jj] = len(V)
        nv0 = len(V)
        if n < 8: V += maxtree(S[n % 2])
        vpos = 0
        nm = len(M)
        for j in range(nm):
            need = req_pv[M[j][2]] if M[j][2] >= 0 else 0
            while vpos < need:
                p.I(V[vpos]); vpos += 1
            p.I(M[j][1])
            if j + D < nm:
                for r in M[j+D][0]: p.I(r)
            target = -(-(j+1) * len(V) // nm)
            if j < 17: target = min(target, nv0)
            while vpos < target:
                p.I(V[vpos]); vpos += 1
        while vpos < len(V):
            p.I(V[vpos]); vpos += 1

    for k, (kind, n) in enumerate(stages):
        p.C(f'==== stage {k}: {kind}{n}')
        top(k)
        if kind == 'Q':
            e = Cap()
            q_reads(k, n, e)
            track(k + 2, e)
            if n in LN2_ST:
                q = LN2_ST.index(n); per = -(-len(LN2) // len(LN2_ST))
                e0 = Cap(); e0.l = LN2[q*per:(q+1)*per]; extra(e, e0)
            if n > 0: merge(p, q_mfmas(n - 1), e.l)
            else:
                for t in e.l: p.I(t)
            if n == 14: w_setup()
            if n == HPUB:
                p.I('s_cmp_lg_u32 s34, 0')
                p.I('s_cbranch_scc1 L_back_h')
                p.I('v_mov_b32 v252, 0')
                p.I('v_mov_b32 v253, 1')
                p.I('s_mov_b64 exec, 1')
                p.I('buffer_atomic_add v253, v252, s[96:99], 0 offen sc1')
                p.I('s_mov_b64 exec, -1')
                p.L('L_back_h:')
        elif kind == 'T':
            if n == 0:
                for t in q_mfmas(15): p.I(t)
                w_setup2()
                for r in range(64): p.I(f'v_mul_f32 v{ACC+r}, s50, v{ACC+r}')
                for t in range(4):
                    for tp in range(2):
                        for d in range(4):
                            r = ACC + 16*t + 8*tp + 2*d
                            p.I(f'v_cvt_pk_bf16_f32 v{QB+4*(2*t+tp)+d}, v{r}, v{r+1}')
            t_stage(k, n)
            if n == 8:
                p.I(f'v_mov_b32 v{vt}, v{vl}')
                p.I(f'v_permlane32_swap_b32 v{vl}, v{vt}')
                p.I(f'v_add_f32 v{vl}, v{vl}, v{vt}')
                p.I(f'v_rcp_f32 v{vl}, v{vl}')
                p.I('s_lshl_b32 s40, s35, 14')
                p.I(f'v_add_u32 v252, s40, v{vXq}')
                for t in range(4):
                    for tp in range(2):
                        r = ACC + 16*t + 8*tp
                        o = 128 + 4*(2*t+tp)
                        for j in range(8): p.I(f'v_mul_f32 v{r+j}, v{r+j}, v{vl}')
                        for d in range(4): p.I(f'v_cvt_pk_bf16_f32 v{o+d}, v{r+2*d}, v{r+2*d+1}')
                        p.I(f'v_xor_b32 v{CUR+2*t+tp}, {(4*(t%2)+2*tp)*16}, v252')
                        p.I(f'ds_write_b128 v{CUR+2*t+tp}, {vr(o,4)} offset:{(t//2)*8192}')
        else:
            e = Cap()
            w_reads(k, n, e)
            track(k + 2, e)
            if n == 10:
                e0 = Cap()
                e0.I('v_mov_b32 v24, 0')
                e0.I('buffer_load_dword v25, v24, s[96:99], 0 offen sc1')
                extra(e, e0)
            if n > 0: merge(p, w_mfmas(n - 1), e.l)
            else:
                for t in e.l: p.I(t)
    p.I('s_lshl_b32 s94, s32, 21')
    p.I('s_lshl_b32 s95, s33, 16')
    p.I('s_add_u32 s94, s94, s95')
    p.I('s_add_u32 s94, s94, s41')
    p.I('s_add_u32 s95, s94, 32768')
    def attn_tail():
        for t in w_mfmas(15): p.I(t)
        for ta in range(2):
            for tb in range(2):
                for tp in range(2):
                    r = ACC + 16*(2*ta+tb) + 8*tp
                    o = 192 + 4*(4*ta+2*tb+tp)
                    for d in range(4): p.I(f'v_cvt_pk_bf16_f32 v{o+d}, v{r+2*d}, v{r+2*d+1}')
                    p.I(f'buffer_store_dwordx4 {vr(o,4)}, v{vL16}, s[28:31], s{95 if tb else 94} offen offset:{(4*ta+2*tp)*512}{PART_SC}')
        return 8
    p.I('s_cmp_ge_u32 s33, 28')
    p.I('s_cbranch_scc0 L_gemm1')
    attn_tail()
    if st: stamp_tail(p, 41)
    p.I('s_endpgm')
    for n, Sc in fixups:
        p.L(f'L_fix{n}:')
        p.I('s_nop 15')
        p.I(f'v_mov_b32 v{vt}, v{vmx}')
        p.I(f'v_permlane32_swap_b32 v{vmx}, v{vt}')
        p.I(f'v_max3_f32 v{vmx}, v{vmx}, v{vt}, 0')
        p.I(f'v_sub_f32 v{va}, 0, v{vmx}')
        p.I(f'v_exp_f32 v{va}, v{va}')
        for r in range(32): p.I(f'v_sub_f32 v{Sc+r}, v{Sc+r}, v{vmx}')
        for r in range(16): p.I(f'v_sub_f32 v{NM+r}, v{NM+r}, v{vmx}')
        p.I(f'v_mul_f32 v{vl}, v{vl}, v{va}')
        for r in range(64): p.I(f'v_mul_f32 v{ACC+r}, v{ACC+r}, v{va}')
        p.I('s_nop 3')
        p.I(f's_branch L_back{n}')

    p.L('L_gemm1:')
    p.I('s_waitcnt lgkmcnt(0)')
    p.I('s_barrier')
    p.I('s_mov_b32 s3, s2')
    p.I('s_and_b32 s40, s3, 7')
    p.I('s_lshr_b32 s41, s3, 3')
    p.I('s_and_b32 s32, s41, 7')
    p.I('s_and_b32 s33, s41, 24')
    p.I('s_add_u32 s33, s33, s40')
    p.I('s_lshr_b32 s42, s40, 1')
    p.I('s_add_u32 s42, s42, 24')
    p.I('s_and_b32 s43, s40, 1')
    p.I('s_lshl_b32 s43, s43, 2')
    p.I('s_add_u32 s43, s43, s32')
    p.I('s_cmp_ge_u32 s41, 24')
    p.I('s_cselect_b32 s33, s42, s33')
    p.I('s_cselect_b32 s32, s43, s32')
    srd(p, 12, 48, 49, 2 << 20, WS_H)
    srd(p, 8, 4, 5, 2048*1792*2)
    srd(p, 16, 6, 7, 1792*2)
    srd(p, 20, 48, 49, U_BYTES, WS_U)
    srd(p, 24, 100, 101, 1792*2048*2)
    p.I(f's_mul_i32 s44, s34, {16*3584}')
    p.I('s_lshl_b32 s40, s33, 7')
    p.I('s_add_u32 s44, s44, s40')
    p.I('s_lshl_b32 s45, s34, 14')
    p.I('s_lshl_b32 s40, s32, 7')
    p.I('s_add_u32 s45, s45, s40')
    def g1_hooks(e, n):
        if n == -1:
            e.I('s_lshl_b32 s40, s33, 7')
            e.I('s_lshl_b32 s41, s35, 6')
            e.I('s_add_u32 s40, s40, s41')
            e.I('s_lshl_b32 s41, s37, 5')
            e.I('s_add_u32 s46, s40, s41')
            e.I('v_lshrrev_b32 v252, 5, v1')
            e.I('v_lshlrev_b32 v20, 4, v252')
            e.I('buffer_load_dwordx4 v[16:19], v20, s[16:19], s46 offen')
        if n == 15:
            e.I('s_lshr_b32 s42, s3, 3')
            e.I('s_lshl_b32 s42, s42, 3')
            e.I('s_add_u32 s42, s42, s34')
            e.I('s_lshl_b32 s42, s42, 15')
            e.I('s_and_b32 s43, s3, 3')
            e.I('s_lshl_b32 s43, s43, 10')
            e.I('s_add_u32 s42, s42, s43')
            e.I('v_lshrrev_b32 v252, 3, v1')
            e.I('v_and_b32 v253, 7, v1')
            e.I('v_lshlrev_b32 v253, 7, v253')
            e.I('v_lshl_add_u32 v252, v252, 12, v253')
            e.I('buffer_load_dword v22, v252, s[24:27], s42 offen')
    def g1_gate(ph):
        if ph == 1:
            p.L('L_g1_poll:')
            p.I('v_readfirstlane_b32 s40, v25')
            p.I('s_cmp_ge_u32 s40, 256')
            p.I('s_cbranch_scc1 L_g1_go')
            p.I('s_sleep 8')
            p.I('buffer_load_dword v25, v24, s[96:99], 0 offen sc1')
            p.I('s_waitcnt vmcnt(0)')
            p.I('s_branch L_g1_poll')
            p.L('L_g1_go:')
    gemm64(p, 'g1', 16, 'tr', 8, 12, 3584, 1024, 44, 45, 128*3584, 128*1024, g1_hooks, g1_gate, ' sc1', attn_tail)
    p.I('s_mov_b32 s40, 0xffff0000')
    k0 = math.sqrt(2.0/math.pi)
    p.I(f's_mov_b32 s41, {f32hex(-2.0*k0*LOG2E)}')
    p.I(f's_mov_b32 s42, {f32hex(-2.0*k0*LOG2E*0.044715)}')
    for i in range(4):
        p.I(f'v_lshlrev_b32 v{72+2*i}, 16, v{16+i}')
        p.I(f'v_and_b32 v{72+2*i+1}, s40, v{16+i}')
    for j in range(8): p.I(f'v_add_f32 v{64+j}, v{64+j}, v{72+j}')
    for j in range(8): p.I(f'v_mul_f32 v{72+j}, v{64+j}, v{64+j}')
    p.I('v_mov_b32 v21, s41')
    for j in range(8): p.I(f'v_fma_f32 v{72+j}, v{72+j}, s42, v21')
    for j in range(8): p.I(f'v_mul_f32 v{72+j}, v{72+j}, v{64+j}')
    for j in range(8): p.I(f'v_exp_f32 v{72+j}, v{72+j}')
    for j in range(8): p.I(f'v_add_f32 v{72+j}, 1.0, v{72+j}')
    for j in range(8): p.I(f'v_rcp_f32 v{72+j}, v{72+j}')
    for j in range(8): p.I(f'v_mul_f32 v{64+j}, v{64+j}, v{72+j}')
    for d in range(4): p.I(f'v_cvt_pk_bf16_f32 v{80+d}, v{64+2*d}, v{64+2*d+1}')
    p.I('v_and_b32 v252, 31, v1')
    p.I('s_lshl_b32 s40, s32, 6')
    p.I('s_lshl_b32 s41, s36, 5')
    p.I('s_add_u32 s40, s40, s41')
    p.I('v_add_u32 v252, s40, v252')
    p.I('s_mov_b32 s41, 3584')
    p.I('v_mul_lo_u32 v252, v252, s41')
    p.I('v_add_u32 v252, v252, v20')
    p.I('buffer_store_dwordx4 v[80:83], v252, s[20:23], s46 offen')
    if STAMPS and STAG in ('g1', 'both'): stamp_tail(p, 16)
    p.L('L_main_done:')
    p.I('s_endpgm')
    return p.finalize()

def gen_final():
    p = Prog()
    p.I('s_cmp_ge_u32 s2, 256')
    p.I('s_cbranch_scc1 L_fin_done')
    p.I('s_lshr_b32 s3, s2, 3')
    p.I('s_bfe_u32 s32, s2, 0x10002')
    p.I('s_lshl_b32 s32, s32, 2')
    p.I('s_lshr_b32 s33, s3, 3')
    p.I('s_add_u32 s32, s32, s33')
    p.I('s_and_b32 s33, s2, 3')
    p.I('s_lshl_b32 s33, s33, 3')
    p.I('s_and_b32 s40, s3, 7')
    p.I('s_add_u32 s33, s33, s40')
    p.I('s_load_dwordx2 s[4:5], s[0:1], 0')
    p.I('s_load_dwordx4 s[44:47], s[0:1], 64')
    p.I('s_load_dwordx2 s[6:7], s[0:1], 80')
    p.I('s_load_dwordx2 s[48:49], s[0:1], 96')
    lane_setup(p)
    p.I('s_waitcnt lgkmcnt(0)')
    srd(p, 8, 48, 49, U_BYTES, WS_U)
    srd(p, 12, 44, 45, 1792*2048*2)
    srd(p, 16, 46, 47, 2048*2)
    srd(p, 20, 4, 5, 2 << 20)
    srd(p, 24, 6, 7, 2 << 20)
    srd(p, 28, 48, 49, 16 << 20, WS_PART)
    p.I('s_lshl_b32 s40, s32, 6')
    p.I('s_lshl_b32 s41, s34, 3')
    p.I('s_add_u32 s40, s40, s41')
    p.I('s_mul_i32 s52, s40, 3584')
    p.I('s_lshl_b32 s53, s34, 16')
    p.I('s_lshl_b32 s40, s33, 7')
    p.I('s_add_u32 s53, s53, s40')
    def fin_hooks(e, n):
        if n == -1:
            e.I('s_bfe_u32 s40, s2, 0x10002')
            e.I('s_lshl_b32 s40, s40, 8')
            e.I('s_lshl_b32 s41, s3, 3')
            e.I('s_add_u32 s40, s40, s41')
            e.I('s_add_u32 s40, s40, s34')
            e.I('s_mul_i32 s40, s40, 3584')
            e.I('v_min_u32 v252, 27, v1')
            e.I('v_lshlrev_b32 v252, 7, v252')
            e.I('buffer_load_dword v23, v252, s[8:11], s40 offen')
            e.I('v_and_b32 v252, 31, v1')
            e.I('s_lshl_b32 s40, s33, 6')
            e.I('s_lshl_b32 s41, s36, 5')
            e.I('s_add_u32 s55, s40, s41')
            e.I('v_add_u32 v253, s55, v252')
            e.I('v_lshlrev_b32 v24, 1, v253')
            e.I('s_lshl_b32 s41, s32, 7')
            e.I('s_lshl_b32 s42, s35, 6')
            e.I('s_add_u32 s41, s41, s42')
            e.I('s_lshl_b32 s42, s37, 5')
            e.I('s_add_u32 s54, s41, s42')
            e.I('v_lshrrev_b32 v254, 5, v1')
            e.I('v_lshlrev_b32 v254, 4, v254')
            e.I('v_lshl_add_u32 v21, v253, 10, v254')
            e.I('s_lshl_b32 s55, s55, 10')
            e.I('s_lshl_b32 s41, s54, 5')
            e.I('s_add_u32 s55, s55, s41')
            e.I('v_lshlrev_b32 v25, 4, v1')
        if 2 <= n < 10:
            g = n - 2
            e.I(f's_add_u32 s42, s55, {g << 21}')
            e.I(f'buffer_load_dwordx4 {vr(96+4*g,4)}, v25, s[28:31], s42 offen')
        if n == 1:
            e.I('buffer_load_ushort v20, v24, s[16:19], 0 offen')
            e.I('buffer_load_dwordx4 v[16:19], v21, s[20:23], s54 offen')
    gemm64(p, 'g2', 14, 'row', 8, 12, 3584, 4096, 52, 53, 256, 128*4096, fin_hooks)
    p.I('s_mov_b32 s40, 0xffff0000')
    p.I(f's_mov_b32 s41, {f32hex(-LOG2E)}')
    p.I('v_lshlrev_b32 v20, 16, v20')
    for j in range(8): p.I(f'v_add_f32 v{64+j}, v{64+j}, v20')
    for j in range(8): p.I(f'v_mul_f32 v{72+j}, s41, v{64+j}')
    for j in range(8): p.I(f'v_exp_f32 v{72+j}, v{72+j}')
    for j in range(8): p.I(f'v_add_f32 v{72+j}, 1.0, v{72+j}')
    for j in range(8): p.I(f'v_rcp_f32 v{72+j}, v{72+j}')
    for j in range(8): p.I(f'v_mul_f32 v{64+j}, v{64+j}, v{72+j}')
    for g in range(8):
        for i in range(4):
            if g == 0:
                p.I(f'v_lshlrev_b32 v{72+2*i}, 16, v{96+i}')
                p.I(f'v_and_b32 v{72+2*i+1}, s40, v{96+i}')
            else:
                p.I(f'v_lshlrev_b32 v{80+2*i}, 16, v{96+4*g+i}')
                p.I(f'v_and_b32 v{80+2*i+1}, s40, v{96+4*g+i}')
        if g:
            for j in range(8): p.I(f'v_add_f32 v{72+j}, v{72+j}, v{80+j}')
    for i in range(4):
        p.I(f'v_lshlrev_b32 v{80+2*i}, 16, v{16+i}')
        p.I(f'v_and_b32 v{80+2*i+1}, s40, v{16+i}')
    for j in range(8): p.I(f'v_fma_f32 v{80+j}, v{72+j}, v{64+j}, v{80+j}')
    for d in range(4): p.I(f'v_cvt_pk_bf16_f32 v{88+d}, v{80+2*d}, v{80+2*d+1}')
    p.I('buffer_store_dwordx4 v[88:91], v21, s[24:27], s54 offen')
    if STAMPS and STAG == 'g2': stamp_tail(p, 14)
    p.L('L_fin_done:')
    p.I('s_endpgm')
    return p.finalize()

def kd(name, vgpr, sgpr=102):
    return f""".p2align 6
.amdhsa_kernel {name}
  .amdhsa_next_free_vgpr {vgpr}
  .amdhsa_next_free_sgpr {sgpr}
  .amdhsa_accum_offset {vgpr}
  .amdhsa_group_segment_fixed_size 0
  .amdhsa_kernarg_size 104
  .amdhsa_user_sgpr_count 2
  .amdhsa_user_sgpr_kernarg_segment_ptr 1
  .amdhsa_system_sgpr_workgroup_id_x 1
.end_amdhsa_kernel
"""

def main(path):
    hdr = open('recurrent_scan__sliding_block_cached__mixer_token_mlp__prompt.s.ref').read().split('; Override launch')[0]
    out = [hdr.rstrip('\n')]
    out.append('; @launch kernel=main_kernel grid=(256,1,1) block=(512,1,1) lds=163840')
    out.append('; @launch kernel=final_kernel grid=(256,1,1) block=(512,1,1) lds=163840')
    out.append('.amdgcn_target "amdgcn-amd-amdhsa--gfx950"\n.text')
    for name, body in (('main_kernel', gen_main()), ('final_kernel', gen_final())):
        out.append(f'.globl {name}\n.p2align 8\n.type {name},@function\n{name}:')
        out.append(body)
    out.append('.section .rodata,"a"')
    out.append(kd('main_kernel', 256, 102))
    out.append(kd('final_kernel', 256, 80))
    open(path, 'w').write('\n'.join(out))

if __name__ == '__main__':
    main(sys.argv[1] if len(sys.argv) > 1 else 'recurrent_scan__sliding_block_cached__mixer_token_mlp__prompt.s')
```

```python
import sys, math, os, struct
sys.path.insert(0, 'gen')
from asmgen import Prog

WS_XN = 0
WS_H = 2 << 20
WS_U = 4 << 20
WS_PART = 8 << 20
WS_S = 6 << 20
WS_KF = 24 << 20
WS_VF = 25 << 20
U_BYTES = 512 * 1792 * 2

LOG2E = 1.4426950408889634
P0 = int(os.environ.get('P0', '4'))
PRIO = int(os.environ.get('PRIO', '1'))
ORD = int(os.environ.get('ORD', '0'))
TD = int(os.environ.get('TD', '6'))
G1W = int(os.environ.get('G1W', '4'))
PART_SC = os.environ.get('PART_SC', ' sc1')
STAG = os.environ.get('STAG', 'main')
STAMPS = bool(int(os.environ.get('STAMPS', '0')))
def f32hex(x):
    return '0x%08x' % struct.unpack('<I', struct.pack('<f', x))[0]

def vr(a, n=1):
    return f'v{a}' if n == 1 else f'v[{a}:{a+n-1}]'

def srd(p, d, lo, hi, nbytes, add=0):
    if add:
        p.I(f's_add_u32 s{d}, s{lo}, {add}')
        p.I(f's_addc_u32 s{d+1}, s{hi}, 0')
        p.I(f's_and_b32 s{d+1}, s{d+1}, 0xffff')
    else:
        p.I(f's_mov_b32 s{d}, s{lo}')
        p.I(f's_and_b32 s{d+1}, s{hi}, 0xffff')
    p.I(f's_mov_b32 s{d+2}, {nbytes}')
    p.I(f's_mov_b32 s{d+3}, 0x20000')

def allreduce(p, op, v, t):
    p.I(f'{op}_dpp v{v}, v{v}, v{v} quad_perm:[1,0,3,2] row_mask:0xf bank_mask:0xf')
    p.I(f'{op}_dpp v{v}, v{v}, v{v} quad_perm:[2,3,0,1] row_mask:0xf bank_mask:0xf')
    p.I(f'{op}_dpp v{v}, v{v}, v{v} row_half_mirror row_mask:0xf bank_mask:0xf')
    p.I(f'{op}_dpp v{v}, v{v}, v{v} row_mirror row_mask:0xf bank_mask:0xf')
    p.I(f'v_mov_b32 v{t}, v{v}')
    p.I(f'v_permlane16_swap_b32 v{v}, v{t}')
    p.I(f'{op} v{v}, v{v}, v{t}')
    p.I(f'v_mov_b32 v{t}, v{v}')
    p.I(f'v_permlane32_swap_b32 v{v}, v{t}')
    p.I(f'{op} v{v}, v{v}, v{t}')

def lane_setup(p, lane=1):
    p.I(f'v_and_b32 v{lane}, 63, v0')
    p.I('v_lshrrev_b32 v252, 6, v0')
    p.I('v_readfirstlane_b32 s34, v252')

def tr_lane_bits(p, lane, rowbytes, pi, dst_row, dst_col, t1):
    sh = int(math.log2(rowbytes))
    p.I(f'v_lshrrev_b32 v{dst_row}, 5, v{lane}')
    p.I(f'v_lshlrev_b32 v{dst_row}, 3, v{dst_row}')
    p.I(f'v_bfe_u32 v{t1}, v{lane}, 2, 2')
    p.I(f'v_add_u32 v{dst_row}, v{dst_row}, v{t1}')
    p.I(f'v_lshlrev_b32 v{dst_row}, {sh}, v{dst_row}')
    p.I(f'v_bfe_u32 v{dst_col}, v{lane}, 4, 1')
    p.I(f'v_lshlrev_b32 v{dst_col}, 5, v{dst_col}')
    if pi:
        p.I(f'v_and_b32 v{t1}, 1, v{lane}')
        p.I(f'v_lshl_add_u32 v{dst_col}, v{t1}, 4, v{dst_col}')
        p.I(f'v_bfe_u32 v{t1}, v{lane}, 1, 1')
        p.I(f'v_lshl_add_u32 v{dst_col}, v{t1}, 3, v{dst_col}')
    else:
        p.I(f'v_and_b32 v{t1}, 3, v{lane}')
        p.I(f'v_lshl_add_u32 v{dst_col}, v{t1}, 3, v{dst_col}')

def pi_row(p, src, dst, t1):
    p.I(f'v_and_b32 v{dst}, 19, v{src}')
    p.I(f'v_bfe_u32 v{t1}, v{src}, 2, 1')
    p.I(f'v_lshl_add_u32 v{dst}, v{t1}, 3, v{dst}')
    p.I(f'v_bfe_u32 v{t1}, v{src}, 3, 1')
    p.I(f'v_lshl_add_u32 v{dst}, v{t1}, 2, v{dst}')

MFMA = 'v_mfma_f32_32x32x16_bf16'

class Cap:
    def __init__(self): self.l = []
    def I(self, t): self.l.append(t)

def nvm(lst):
    return sum(1 for t in lst if t.startswith('buffer_'))

def merge(p, mf, fill):
    pos = 0
    n = len(mf)
    for j, m in enumerate(mf):
        p.I(m)
        tgt = -(-(j + 1) * len(fill) // n)
        while pos < tgt:
            p.I(fill[pos]); pos += 1

def stamp_tail(p, n, wsl=48):
    p.I('s_waitcnt lgkmcnt(0)')
    p.I(f'v_writelane_b32 v0, s60, {n}')
    p.I('s_memtime s[60:61]')
    p.I('s_waitcnt vmcnt(0) lgkmcnt(0)')
    p.I(f'v_writelane_b32 v0, s60, {n+1}')
    p.I('v_writelane_b32 v0, s62, 60')
    p.I('s_memrealtime s[62:63]')
    p.I('s_waitcnt vmcnt(0) lgkmcnt(0)')
    p.I('v_writelane_b32 v0, s62, 61')
    srd(p, 64, wsl, wsl+1, 1 << 20, 64 << 20)
    p.I('s_lshl_b32 s40, s2, 11')
    p.I('s_lshl_b32 s43, s34, 8')
    p.I('s_add_u32 s40, s40, s43')
    p.I('v_lshlrev_b32 v252, 2, v1')
    p.I('buffer_store_dword v0, v252, s[64:67], s40 offen')

def gen_prep():
    p = Prog()
    p.I('s_cmp_ge_u32 s2, 832')
    p.I('s_cbranch_scc1 L_ln_done')
    p.I('s_cmp_ge_u32 s2, 576')
    p.I('s_cbranch_scc1 L_vf')
    p.I('s_cmp_ge_u32 s2, 512')
    p.I('s_cbranch_scc1 L_kf')
    p.I('s_load_dwordx2 s[4:5], s[0:1], 0')
    p.I('s_load_dwordx2 s[6:7], s[0:1], 96')
    p.I('s_load_dwordx4 s[20:23], s[0:1], 24')
    p.I('v_lshrrev_b32 v1, 6, v0')
    p.I('v_and_b32 v2, 63, v0')
    p.I('v_readfirstlane_b32 s34, v1')
    p.I('s_lshl_b32 s3, s2, 2')
    p.I('v_add_u32 v1, s3, v1')
    p.I('v_lshlrev_b32 v1, 10, v1')
    p.I('v_lshl_add_u32 v1, v2, 4, v1')
    p.I('s_waitcnt lgkmcnt(0)')
    srd(p, 8, 4, 5, 2 << 20)
    srd(p, 12, 6, 7, 4 << 20)
    p.I('buffer_load_dwordx4 v[8:11], v1, s[8:11], 0 offen')
    srd(p, 24, 20, 21, 4 << 20)
    srd(p, 28, 22, 23, 4 << 20)
    p.I('s_and_b32 s32, s2, 7')
    p.I('s_lshr_b32 s33, s2, 3')
    p.I('s_lshl_b32 s33, s33, 2')
    p.I('s_add_u32 s33, s33, s34')
    p.I('v_and_b32 v4, 15, v2')
    p.I('v_lshrrev_b32 v5, 3, v4')
    p.I('v_and_b32 v6, 7, v4')
    p.I('v_lshlrev_b32 v6, 7, v6')
    p.I('v_lshl_add_u32 v5, v5, 13, v6')
    p.I('s_lshl_b32 s35, s33, 14')
    p.I('s_lshl_b32 s36, s32, 10')
    p.I('s_add_u32 s35, s35, s36')
    p.I('buffer_load_dword v44, v5, s[24:27], s35 offen')
    p.I('v_lshlrev_b32 v5, 7, v4')
    p.I('s_lshl_b32 s35, s33, 11')
    p.I('s_lshl_b32 s36, s32, 19')
    p.I('s_add_u32 s35, s35, s36')
    p.I('buffer_load_dword v45, v5, s[28:31], s35 offen')
    p.I('s_mov_b32 s16, 0xffff0000')
    p.I(f's_mov_b32 s17, {f32hex(1.0/512)}')
    p.I(f's_mov_b32 s18, {f32hex(1e-5)}')
    E = 16
    def unpack(src):
        for i in range(4):
            p.I(f'v_lshlrev_b32 v{E+2*i}, 16, v{src+i}')
            p.I(f'v_and_b32 v{E+2*i+1}, s16, v{src+i}')
    def rb(v):
        p.I(f'v_cvt_pk_bf16_f32 v{v}, v{v}, v{v}')
        p.I(f'v_lshlrev_b32 v{v}, 16, v{v}')
    def ln(dst):
        p.I(f'v_add_f32 v3, v{E}, v{E+1}')
        for i in range(2, 8): p.I(f'v_add_f32 v3, v3, v{E+i}')
        allreduce(p, 'v_add_f32', 3, 4)
        p.I('v_mul_f32 v3, s17, v3')
        for i in range(8): p.I(f'v_sub_f32 v{24+i}, v{E+i}, v3')
        p.I('v_mul_f32 v5, v24, v24')
        for i in range(1, 8): p.I(f'v_fmac_f32 v5, v{24+i}, v{24+i}')
        allreduce(p, 'v_add_f32', 5, 4)
        p.I('v_mul_f32 v5, s17, v5')
        rb(3); rb(5)
        p.I('v_add_f32 v5, s18, v5'); rb(5)
        p.I('v_sqrt_f32 v5, v5'); rb(5)
        p.I('v_rcp_f32 v5, v5')
        for i in range(8): p.I(f'v_sub_f32 v{24+i}, v{E+i}, v3')
        for i in range(4): p.I(f'v_cvt_pk_bf16_f32 v{32+i}, v{24+2*i}, v{24+2*i+1}')
        for i in range(4):
            p.I(f'v_lshlrev_b32 v{24+2*i}, 16, v{32+i}')
            p.I(f'v_and_b32 v{24+2*i+1}, s16, v{32+i}')
        for i in range(8): p.I(f'v_mul_f32 v{24+i}, v{24+i}, v5')
        for i in range(4): p.I(f'v_cvt_pk_bf16_f32 v{dst+i}, v{24+2*i}, v{24+2*i+1}')
    unpack(8)
    ln(36)
    p.I('buffer_store_dwordx4 v[36:39], v1, s[12:15], 0 offen')
    unpack(36)
    ln(40)
    p.I(f's_mov_b32 s19, {WS_H}')
    p.I('buffer_store_dwordx4 v[40:43], v1, s[12:15], s19 offen')
    p.I('s_endpgm')
    p.L('L_kf:')
    p.I('s_load_dwordx2 s[4:5], s[0:1], 8')
    p.I('s_load_dwordx2 s[6:7], s[0:1], 96')
    p.I('s_sub_u32 s3, s2, 512')
    p.I('s_and_b32 s32, s3, 7')
    p.I('s_lshr_b32 s33, s3, 3')
    p.I('v_lshrrev_b32 v1, 4, v0')
    p.I('v_and_b32 v2, 15, v0')
    p.I('s_waitcnt lgkmcnt(0)')
    srd(p, 8, 4, 5, 4 << 20)
    srd(p, 12, 6, 7, 1 << 20, WS_KF)
    p.I('s_lshl_b32 s35, s32, 19')
    p.I('s_lshl_b32 s36, s33, 14')
    p.I('s_add_u32 s35, s35, s36')
    p.I(f's_add_u32 s35, s35, {1536*256}')
    p.I('v_lshlrev_b32 v3, 4, v0')
    for it in range(4):
        p.I(f'buffer_load_dwordx4 v[{8+4*it}:{11+4*it}], v3, s[8:11], s35 offen offset:{0}' if it == 0 else
            f'buffer_load_dwordx4 v[{8+4*it}:{11+4*it}], v{31+it}, s[8:11], s35 offen')
        if it < 3: p.I(f'v_add_u32 v{32+it}, {4096*(it+1)}, v3')
    p.I('s_lshl_b32 s35, s32, 17')
    p.I('s_add_u32 s35, s35, s36')
    p.I('v_lshrrev_b32 v4, 1, v2')
    p.I('v_and_b32 v5, 1, v2')
    p.I('v_lshlrev_b32 v4, 10, v4')
    p.I('v_lshl_add_u32 v4, v5, 9, v4')
    for it in range(4):
        p.I(f'v_add_u32 v6, {16*(it%2)}, v1')
        pi_row(p, 6, 7, 24)
        p.I('v_lshl_add_u32 v7, v7, 4, v4')
        p.I(f'v_add_u32 v{40+it}, {8192*(it//2)}, v7')
        p.I(f'buffer_store_dwordx4 v[{8+4*it}:{11+4*it}], v{40+it}, s[12:15], s35 offen')
    p.I('s_endpgm')
    p.L('L_vf:')
    p.I('s_load_dwordx2 s[4:5], s[0:1], 16')
    p.I('s_load_dwordx2 s[6:7], s[0:1], 96')
    p.I('s_sub_u32 s3, s2, 576')
    p.I('s_and_b32 s32, s3, 7')
    p.I('s_lshr_b32 s33, s3, 3')
    p.I('v_and_b32 v1, 63, v0')
    p.I('v_lshrrev_b32 v2, 6, v0')
    pi_row(p, 1, 3, 4)
    p.I('v_lshl_add_u32 v3, v2, 5, v3')
    p.I('v_lshlrev_b32 v3, 1, v3')
    p.I('v_lshrrev_b32 v4, 5, v1')
    p.I('v_lshl_add_u32 v3, v4, 11, v3')
    p.I('s_waitcnt lgkmcnt(0)')
    srd(p, 8, 4, 5, 4 << 20)
    srd(p, 12, 6, 7, 1 << 20, WS_VF)
    p.I('s_lshl_b32 s35, s32, 19')
    p.I('s_lshl_b32 s36, s33, 12')
    p.I('s_add_u32 s35, s35, s36')
    p.I(f's_add_u32 s35, s35, {1536*256}')
    for j in range(8):
        p.I(f'buffer_load_ushort v{16+j}, v3, s[8:11], s35 offen offset:{256*j}')
    p.I('s_lshl_b32 s35, s32, 17')
    p.I('s_add_u32 s35, s35, s36')
    p.I('v_lshlrev_b32 v5, 4, v0')
    for j in range(4):
        p.I(f'v_lshl_or_b32 v{8+j}, v{17+2*j}, 16, v{16+2*j}')
    p.I('buffer_store_dwordx4 v[8:11], v5, s[12:15], s35 offen')
    p.L('L_ln_done:')
    p.I('s_endpgm')
    return p.finalize()

def gemm64(p, tag, nst, a_kind, sA, sB, a_stride, b_stride, s_aoff, s_boff, a_step, b_step, hooks, gate=None, bflag=''):
    NS = 5
    L = 1
    ACC = 64
    st = STAMPS and (tag == STAG or (STAG == 'both' and tag == 'g1'))
    p.I('s_lshr_b32 s37, s34, 2')
    p.I('s_bfe_u32 s35, s34, 0x10001')
    p.I('s_and_b32 s36, s34, 1')
    def dma128(dst0, stride):
        p.I(f'v_lshrrev_b32 v252, 3, v{L}')
        p.I(f'v_and_b32 v253, 7, v{L}')
        p.I(f'v_bfe_u32 v254, v{L}, 4, 1')
        p.I(f'v_lshlrev_b32 v254, 2, v254')
        p.I(f'v_xor_b32 v253, v253, v254')
        p.I(f's_mov_b32 s38, {stride}')
        p.I(f'v_mul_lo_u32 v252, v252, s38')
        p.I(f'v_lshl_add_u32 v{dst0}, v253, 4, v252')
        p.I(f'v_add_u32 v{dst0+1}, {8*stride - 1024}, v{dst0}')
    dma128(2, b_stride)
    if a_kind == 'tr':
        dma128(4, a_stride)
    else:
        p.I(f'v_lshrrev_b32 v252, 4, v{L}')
        p.I('s_and_b32 s38, s34, 1')
        p.I('s_lshl_b32 s38, s38, 3')
        p.I(f'v_and_b32 v253, 15, v{L}')
        p.I(f's_mov_b32 s39, {a_stride}')
        for i in range(2):
            p.I(f'v_add_u32 v254, {4*i}, v252')
            p.I('v_add_u32 v255, s38, v254')
            p.I('v_xor_b32 v255, v253, v255')
            p.I('v_mul_lo_u32 v254, v254, s39')
            p.I(f'v_lshl_add_u32 v{4+i}, v255, 4, v254')
            if i: p.I(f'v_subrev_u32 v{4+i}, {1024*i}, v{4+i}')
    p.I('s_lshl_b32 s39, s34, 11')
    def loads(e, n, parts='ab'):
        sl = (n % NS) * 32768
        if 'a' in parts:
            e.I(f's_add_u32 m0, s39, {sl}')
            e.I(f's_add_u32 s40, s{s_aoff}, {n*a_step}')
            e.I(f'buffer_load_dwordx4 v4, s[{sA}:{sA+3}], s40 offen lds')
            e.I(f'buffer_load_dwordx4 v5, s[{sA}:{sA+3}], s40 offen offset:1024 lds')
        if 'b' in parts:
            e.I(f's_add_u32 m0, s39, {sl+16384}')
            e.I(f's_add_u32 s41, s{s_boff}, {n*b_step}')
            e.I(f'buffer_load_dwordx4 v2, s[{sB}:{sB+3}], s41 offen{bflag} lds')
            e.I(f'buffer_load_dwordx4 v3, s[{sB}:{sB+3}], s41 offen offset:1024{bflag} lds')
    if st:
        p.I('s_memtime s[60:61]')
        p.I('s_memrealtime s[62:63]')
    issued = 0; last = {}
    if gate is None:
        for n in range(NS - 1):
            loads(p, n); issued += 4; last[n] = issued
    else:
        gate(0)
        for n in range(NS - 1): loads(p, n, 'a')
        gate(1)
        for n in range(NS - 1):
            loads(p, n, 'b'); issued += 2; last[n] = issued
    e = Cap(); hooks(e, -1)
    for t in e.l: p.I(t)
    issued += nvm(e.l)
    tr_lane_bits(p, L, 128, False, 252, 253, 254)
    p.I('s_lshl_b32 s38, s36, 6')
    p.I('v_add_u32 v253, s38, v253')
    p.I(f'v_bfe_u32 v254, v{L}, 3, 1')
    p.I('v_lshlrev_b32 v254, 6, v254')
    p.I('v_xor_b32 v253, v253, v254')
    p.I('v_add_u32 v6, v252, v253')
    p.I('s_lshl_b32 s38, s37, 13')
    p.I('v_add_u32 v6, s38, v6')
    if a_kind == 'tr':
        tr_lane_bits(p, L, 128, True, 252, 253, 254)
        p.I('s_lshl_b32 s42, s35, 6')
        p.I('v_add_u32 v253, s42, v253')
        p.I(f'v_bfe_u32 v254, v{L}, 3, 1')
        p.I('v_lshlrev_b32 v254, 6, v254')
        p.I('v_xor_b32 v253, v253, v254')
        p.I('v_add_u32 v7, v252, v253')
        p.I('v_add_u32 v7, s38, v7')
        nA = 1
    else:
        pi_row(p, L, 252, 253)
        p.I('s_lshl_b32 s42, s35, 5')
        p.I('v_add_u32 v252, s42, v252')
        p.I('v_and_b32 v253, 15, v252')
        p.I(f'v_lshrrev_b32 v254, 5, v{L}')
        p.I('v_xor_b32 v253, v253, v254')
        p.I('s_lshl_b32 s42, s37, 3')
        p.I('v_xor_b32 v253, s42, v253')
        p.I('v_lshlrev_b32 v253, 4, v253')
        p.I('v_lshl_add_u32 v252, v252, 8, v253')
        for kq in range(4):
            p.I(f'v_xor_b32 v{7+kq}, {32*kq}, v252')
        nA = 4
    BUF = [128, 160]
    def mfmas(n):
        b = BUF[n % 2]
        r = []
        for kq in range(4):
            c = '0' if (n == 0 and kq == 0) else vr(ACC, 16)
            r.append(f'{MFMA} {vr(ACC,16)}, {vr(b+8*kq,4)}, {vr(b+8*kq+4,4)}, {c}')
        return r
    for n in range(nst):
        sl = (n % NS) * 32768
        p.I(f's_waitcnt vmcnt({issued - last[n]}) lgkmcnt(0)')
        if st: p.I(f'v_writelane_b32 v0, s60, {n}')
        p.I('s_barrier')
        if st: p.I('s_memtime s[60:61]')
        b = BUF[n % 2]
        p.I(f'v_add_u32 v240, {sl}, v6')
        for i in range(nA): p.I(f'v_add_u32 v{241+i}, {sl}, v{7+i}')
        e = Cap()
        for kq in range(4):
            if a_kind == 'tr':
                e.I(f'ds_read_b64_tr_b16 {vr(b+8*kq,2)}, v241 offset:{kq*2048}')
                e.I(f'ds_read_b64_tr_b16 {vr(b+8*kq+2,2)}, v241 offset:{kq*2048+512}')
            else:
                e.I(f'ds_read_b128 {vr(b+8*kq,4)}, v{241+kq}')
            e.I(f'ds_read_b64_tr_b16 {vr(b+8*kq+4,2)}, v240 offset:{16384+kq*2048}')
            e.I(f'ds_read_b64_tr_b16 {vr(b+8*kq+6,2)}, v240 offset:{16384+kq*2048+512}')
        if n + NS - 1 < nst:
            loads(e, n + NS - 1); issued += 4; last[n + NS - 1] = issued
        e2 = Cap(); hooks(e2, n); issued += nvm(e2.l)
        e.l += e2.l
        if n > 0: merge(p, mfmas(n - 1), e.l)
        else:
            for t in e.l: p.I(t)
    for t in mfmas(nst - 1): p.I(t)
    eb = (nst % NS) * 32768
    p.I('s_lshl_b32 s38, s34, 12')
    p.I(f'v_lshlrev_b32 v252, 4, v{L}')
    p.I('v_add_u32 v253, s38, v252')
    p.I(f'v_add_u32 v253, {eb}, v253')
    for q in range(4):
        p.I(f'ds_write_b128 v253, {vr(ACC+4*q,4)} offset:{q*1024}')
    p.I('s_and_b32 s38, s34, 3')
    p.I('s_lshl_b32 s38, s38, 12')
    p.I('s_lshl_b32 s40, s37, 11')
    p.I('s_add_u32 s38, s38, s40')
    p.I('v_add_u32 v253, s38, v252')
    p.I(f'v_add_u32 v253, {eb}, v253')
    p.I('s_waitcnt lgkmcnt(0)')
    p.I('s_barrier')
    p.I(f'ds_read_b128 v[64:67], v253')
    p.I(f'ds_read_b128 v[68:71], v253 offset:1024')
    p.I(f'ds_read_b128 v[72:75], v253 offset:16384')
    p.I(f'ds_read_b128 v[76:79], v253 offset:17408')
    for j in range(8):
        p.I(f'v_add_f32 v{64+j}, v{64+j}, v{72+j}')

def gen_main():
    p = Prog()
    st = STAMPS and STAG in ('main', 'both')
    p.I('s_cmp_ge_u32 s2, 480')
    p.I('s_cbranch_scc1 L_main_done')
    p.I('s_cmp_ge_u32 s2, 256')
    p.I('s_cbranch_scc1 L_gemm1')
    p.I('s_load_dwordx2 s[92:93], s[0:1], 88')
    p.I('s_load_dwordx2 s[58:59], s[0:1], 0')
    p.I('s_load_dwordx4 s[68:71], s[0:1], 8')
    p.I('s_load_dwordx4 s[44:47], s[0:1], 24')
    p.I('s_load_dwordx2 s[4:5], s[0:1], 48')
    p.I('s_load_dwordx2 s[48:49], s[0:1], 96')
    L = 1
    lane_setup(p)
    p.I('s_and_b32 s32, s2, 7')
    p.I('s_lshr_b32 s33, s2, 3')
    p.I('s_waitcnt lgkmcnt(0)')
    srd(p, 8, 48, 49, 2 << 20, WS_H)
    srd(p, 12, 68, 69, 4 << 20)
    srd(p, 72, 70, 71, 4 << 20)
    srd(p, 76, 58, 59, 2 << 20)
    srd(p, 96, 92, 93, 256)
    srd(p, 16, 4, 5, 2048*1792*2)
    srd(p, 20, 44, 45, 4 << 20)
    srd(p, 24, 46, 47, 4 << 20)
    srd(p, 28, 48, 49, 16 << 20, WS_PART)
    p.I('s_lshr_b32 s35, s34, 1')
    p.I('s_and_b32 s36, s34, 1')
    c = LOG2E / math.sqrt(128.0)
    p.I(f's_mov_b32 s50, {f32hex(c)}')
    p.I(f's_mov_b32 s51, {f32hex(8.0)}')
    SLOT = lambda n: 65536 + (n % 3) * 32768
    ACC = 64; QB = 128; S = [160, 192]; NM = 224; STG = 32
    vDq = 2; vDk = 6; vDv = 8; vAq = 9; vXq = 13; vK = 14; vV = 22; vL16 = 26
    vl, va, vmx, vt = 27, 28, 30, 31
    CUR = 240
    p.I(f'v_lshlrev_b32 v{vL16}, 4, v{L}')
    XR = 32
    p.I('s_lshl_b32 s57, s33, 16')
    p.I('s_lshl_b32 s40, s34, 13')
    p.I('s_add_u32 s57, s57, s40')
    p.I(f'v_lshrrev_b32 v252, 3, v{L}')
    p.I(f'v_and_b32 v253, 7, v{L}')
    p.I('v_lshlrev_b32 v254, 4, v253')
    p.I('v_lshl_add_u32 v254, v252, 10, v254')
    for i in range(8):
        p.I(f'buffer_load_dwordx4 {vr(XR+4*i,4)}, v254, s[76:79], s57 offen offset:{128*i}')
    p.I('s_lshl_b32 s56, s34, 3')
    p.I('v_add_u32 v252, s56, v252')
    p.I('v_bfe_u32 v254, v252, 1, 3')
    p.I('v_xor_b32 v253, v253, v254')
    p.I('v_lshlrev_b32 v253, 4, v253')
    p.I('v_lshl_add_u32 v239, v252, 7, v253')
    for i in range(4):
        p.I(f'v_xor_b32 v{vDq+i}, {4*i}, v{L}')
        p.I(f'v_lshlrev_b32 v{vDq+i}, 4, v{vDq+i}')
        if i: p.I(f'v_add_u32 v{vDq+i}, {7168*i}, v{vDq+i}')
    p.I('s_lshl_b32 s39, s36, 3')
    p.I(f'v_lshrrev_b32 v252, 4, v{L}')
    p.I(f'v_and_b32 v253, 15, v{L}')
    for i in range(2):
        p.I(f's_add_u32 s40, s39, {4*i}')
        p.I('v_add_u32 v254, s40, v252')
        p.I('v_xor_b32 v254, v253, v254')
        p.I('v_lshlrev_b32 v254, 4, v254')
        p.I(f'v_lshl_add_u32 v{vDk+i}, v252, 8, v254')
    p.I('v_lshlrev_b32 v254, 2, v252')
    p.I('v_xor_b32 v254, v253, v254')
    p.I('v_lshlrev_b32 v254, 4, v254')
    p.I(f'v_lshl_add_u32 v{vDv}, v252, 8, v254')
    p.I('s_lshl_b32 s41, s34, 12')
    p.I('s_lshl_b32 s42, s34, 11')
    p.I('s_lshl_b32 s52, s34, 15')
    p.I('s_lshl_b32 s40, s32, 10')
    p.I('s_add_u32 s52, s52, s40')
    p.I('s_lshl_b32 s53, s32, 19')
    p.I('s_add_u32 s53, s53, s42')
    p.I(f's_add_u32 s53, s53, {1536*256}')
    p.I('s_lshl_b32 s54, s32, 19')
    p.I('s_add_u32 s54, s54, s41')
    stages = [('Q', n) for n in range(16)] + [('T', n) for n in range(9)] + [('W', n) for n in range(16)]
    def loads(k, e):
        if k >= len(stages): return
        kind, n = stages[k]
        sl = SLOT(k)
        if kind == 'Q':
            e.I(f's_add_u32 m0, s41, {sl}')
            e.I(f's_add_u32 s40, s52, {n*262144}')
            for i in range(4):
                e.I(f'buffer_load_dwordx4 v{vDq+i}, s[20:23], s40 offen offset:{1024*i} lds')
        elif kind == 'W':
            e.I(f's_add_u32 m0, s41, {sl}')
            e.I(f's_add_u32 s40, s54, {n*32768}')
            for i in range(4):
                e.I(f'buffer_load_dwordx4 v{vDq+i}, s[24:27], s40 offen offset:{1024*i} lds')
        else:
            if n < 8:
                e.I(f's_add_u32 m0, s42, {sl}')
                e.I(f's_add_u32 s40, s53, {n*16384}')
                for i in range(2):
                    e.I(f'buffer_load_dwordx4 v{vDk+i}, s[12:15], s40 offen offset:{1024*i} lds')
            if n > 0:
                e.I(f's_add_u32 m0, s42, {sl+16384}')
                e.I(f's_add_u32 s43, s53, {(n-1)*16384}')
                for i in range(2):
                    e.I(f'buffer_load_dwordx4 v{vDv}, s[72:75], s43 offen offset:{1024*i} lds')
    cnt = {'issued': 8}; last = {}
    def track(k, e):
        e0 = Cap(); loads(k, e0)
        cnt['issued'] += nvm(e0.l); last[k] = cnt['issued']
        e.l += e0.l
    def extra(e, e0):
        cnt['issued'] += nvm(e0.l); e.l += e0.l
    if st:
        p.I('s_memtime s[60:61]')
        p.I('s_memrealtime s[62:63]')
    e = Cap()
    track(0, e); track(1, e)
    def warm(e0, what):
        e0.I('s_lshl_b32 s94, s33, 3')
        e0.I('s_add_u32 s94, s94, s34')
        e0.I(f'v_and_b32 v252, 15, v{L}')
        if what == 'wq':
            e0.I('v_lshrrev_b32 v253, 3, v252')
            e0.I('v_and_b32 v254, 7, v252')
            e0.I('v_lshlrev_b32 v254, 7, v254')
            e0.I('v_lshl_add_u32 v253, v253, 13, v254')
            e0.I('s_lshl_b32 s94, s94, 14')
            e0.I('s_lshl_b32 s95, s32, 10')
            e0.I('s_add_u32 s94, s94, s95')
            e0.I('buffer_load_dword v248, v253, s[20:23], s94 offen')
        elif what == 'kv':
            e0.I('v_lshlrev_b32 v253, 7, v252')
            e0.I('v_and_b32 v253, 0x180, v253')
            e0.I('s_lshl_b32 s95, s32, 19')
            e0.I('s_lshl_b32 s94, s94, 9')
            e0.I('s_add_u32 s94, s94, s95')
            e0.I(f's_add_u32 s94, s94, {1536*256}')
            e0.I('buffer_load_dword v249, v253, s[12:15], s94 offen')
            e0.I('buffer_load_dword v250, v253, s[72:75], s94 offen')
        else:
            e0.I('v_lshlrev_b32 v253, 7, v252')
            e0.I('s_lshl_b32 s95, s32, 19')
            e0.I('s_lshl_b32 s94, s94, 11')
            e0.I('s_add_u32 s94, s94, s95')
            e0.I('buffer_load_dword v255, v253, s[24:27], s94 offen')
    e0 = Cap(); warm(e0, 'wq'); warm(e0, 'kv')
    extra(e, e0)
    for t in e.l: p.I(t)
    tr_lane_bits(p, L, 1024, True, 252, 253, 254)
    p.I(f'v_bfe_u32 v254, v{L}, 2, 2')
    p.I('v_lshlrev_b32 v254, 6, v254')
    p.I('s_lshl_b32 s40, s35, 8')
    p.I('v_add_u32 v255, s40, v253')
    p.I('v_add_u32 v255, v255, v252')
    p.I('v_add_u32 v255, v255, v254')
    for t in range(4):
        p.I(f'v_xor_b32 v{vAq+t}, {64*t}, v255')
    p.I(f'v_and_b32 v252, 31, v{L}')
    p.I(f'v_lshrrev_b32 v253, 5, v{L}')
    p.I('v_bfe_u32 v254, v252, 1, 3')
    p.I('v_xor_b32 v254, v254, v253')
    p.I('v_lshlrev_b32 v254, 4, v254')
    p.I('v_lshl_add_u32 v254, v252, 7, v254')
    p.I('s_lshl_b32 s40, s36, 12')
    p.I(f'v_add_u32 v{vXq}, s40, v254')
    pi_row(p, L, 252, 254)
    p.I('v_and_b32 v254, 15, v252')
    p.I('v_xor_b32 v254, v254, v253')
    p.I('v_lshlrev_b32 v254, 4, v254')
    p.I('v_lshl_add_u32 v254, v252, 8, v254')
    for k in range(8):
        p.I(f'v_xor_b32 v{vK+k}, {32*k}, v254')
    tr_lane_bits(p, L, 256, True, 252, 253, 254)
    p.I(f'v_bfe_u32 v254, v{L}, 2, 2')
    p.I('v_lshlrev_b32 v254, 6, v254')
    p.I('v_add_u32 v255, v252, v253')
    p.I('v_add_u32 v255, v255, v254')
    for t in range(4):
        p.I(f'v_xor_b32 v{vV+t}, {64*t}, v255')
    p.I('s_mov_b32 s88, 0xffff0000')
    p.I(f's_mov_b32 s89, {f32hex(1.0/512)}')
    p.I(f's_mov_b32 s90, {f32hex(1e-5)}')
    def pr(a): return f'v[{a}:{a+1}]'
    def rbf(e, v):
        e.I(f'v_cvt_pk_bf16_f32 v{v}, v{v}, v{v}')
        e.I(f'v_lshlrev_b32 v{v}, 16, v{v}')
    def stats(e, A, B):
        e.I(f'v_mul_f32 v{B}, s89, v{B}')
        rbf(e, A); rbf(e, B)
        e.I(f'v_add_f32 v{B}, s90, v{B}'); rbf(e, B)
        e.I(f'v_sqrt_f32 v{B}, v{B}'); rbf(e, B)
        e.I(f'v_rcp_f32 v{B}, v{B}')
    E = 64; Dd = 128; A = 192; B = 194; P0 = 196; P1 = 198
    def red8(v):
        for mod in ('quad_perm:[1,0,3,2]', 'quad_perm:[2,3,0,1]', 'row_half_mirror'):
            p.I(f'v_add_f32_dpp v{v}, v{v}, v{v} {mod} row_mask:0xf bank_mask:0xf')
    for i in range(32):
        p.I(f'v_lshlrev_b32 v{E+2*i}, 16, v{XR+i}')
        p.I(f'v_and_b32 v{E+2*i+1}, s88, v{XR+i}')
    p.I(f'v_pk_add_f32 {pr(P0)}, {pr(E)}, {pr(E+2)}')
    p.I(f'v_pk_add_f32 {pr(P1)}, {pr(E+4)}, {pr(E+6)}')
    for i in range(4, 32, 2):
        p.I(f'v_pk_add_f32 {pr(P0)}, {pr(P0)}, {pr(E+2*i)}')
        p.I(f'v_pk_add_f32 {pr(P1)}, {pr(P1)}, {pr(E+2*i+2)}')
    p.I(f'v_pk_add_f32 {pr(P0)}, {pr(P0)}, {pr(P1)}')
    p.I(f'v_add_f32 v{A}, v{P0}, v{P0+1}')
    red8(A)
    p.I(f'v_mul_f32 v{A}, s89, v{A}')
    for i in range(32): p.I(f'v_pk_add_f32 {pr(Dd+2*i)}, {pr(E+2*i)}, {pr(A)} op_sel_hi:[1,0] neg_lo:[0,1] neg_hi:[0,1]')
    p.I(f'v_pk_mul_f32 {pr(P0)}, {pr(Dd)}, {pr(Dd)}')
    p.I(f'v_pk_mul_f32 {pr(P1)}, {pr(Dd+2)}, {pr(Dd+2)}')
    for i in range(2, 32, 2):
        p.I(f'v_pk_fma_f32 {pr(P0)}, {pr(Dd+2*i)}, {pr(Dd+2*i)}, {pr(P0)}')
        p.I(f'v_pk_fma_f32 {pr(P1)}, {pr(Dd+2*i+2)}, {pr(Dd+2*i+2)}, {pr(P1)}')
    p.I(f'v_pk_add_f32 {pr(P0)}, {pr(P0)}, {pr(P1)}')
    p.I(f'v_add_f32 v{B}, v{P0}, v{P0+1}')
    red8(B)
    stats(p, A, B)
    for i in range(8):
        for j in range(4): p.I(f'v_pk_add_f32 {pr(Dd+8*i+2*j)}, {pr(E+8*i+2*j)}, {pr(A)} op_sel_hi:[1,0] neg_lo:[0,1] neg_hi:[0,1]')
        for j in range(4): p.I(f'v_cvt_pk_bf16_f32 v{E+8*i+j}, v{Dd+8*i+2*j}, v{Dd+8*i+2*j+1}')
        for j in range(4):
            p.I(f'v_lshlrev_b32 v{Dd+8*i+2*j}, 16, v{E+8*i+j}')
            p.I(f'v_and_b32 v{Dd+8*i+2*j+1}, s88, v{E+8*i+j}')
        for j in range(4): p.I(f'v_pk_mul_f32 {pr(Dd+8*i+2*j)}, {pr(Dd+8*i+2*j)}, {pr(B)} op_sel_hi:[1,0]')
        for j in range(4): p.I(f'v_cvt_pk_bf16_f32 v{XR+4*i+j}, v{Dd+8*i+2*j}, v{Dd+8*i+2*j+1}')
        p.I(f'ds_write_b128 v239, {vr(XR+4*i,4)} offset:{8192*i}')
    def ln2_code():
        e = Cap()
        E2 = 32; D2 = 40; A2 = 48; B2 = 49; T2 = 50; SRC = 52; DST = 56
        e.I('s_add_u32 s91, s56, s32')
        e.I('s_bfe_u32 s94, s91, 0x30001')
        e.I(f'v_and_b32 v60, 7, v{L}')
        e.I('v_xor_b32 v60, s94, v60')
        e.I('v_lshlrev_b32 v60, 4, v60')
        e.I(f'v_lshrrev_b32 v61, 3, v{L}')
        e.I('v_lshl_add_u32 v60, v61, 13, v60')
        e.I('s_lshl_b32 s94, s91, 7')
        e.I('v_add_u32 v60, s94, v60')
        e.I(f'ds_read_b128 {vr(SRC,4)}, v60')
        for i in range(4):
            e.I(f'v_lshlrev_b32 v{E2+2*i}, 16, v{SRC+i}')
            e.I(f'v_and_b32 v{E2+2*i+1}, s88, v{SRC+i}')
        e.I(f'v_add_f32 v{A2}, v{E2}, v{E2+1}')
        for i in range(2, 8): e.I(f'v_add_f32 v{A2}, v{A2}, v{E2+i}')
        allreduce(e, 'v_add_f32', A2, T2)
        e.I(f'v_mul_f32 v{A2}, s89, v{A2}')
        for i in range(8): e.I(f'v_sub_f32 v{D2+i}, v{E2+i}, v{A2}')
        e.I(f'v_mul_f32 v{B2}, v{D2}, v{D2}')
        for i in range(1, 8): e.I(f'v_fmac_f32 v{B2}, v{D2+i}, v{D2+i}')
        allreduce(e, 'v_add_f32', B2, T2)
        stats(e, A2, B2)
        for i in range(8): e.I(f'v_sub_f32 v{D2+i}, v{E2+i}, v{A2}')
        for i in range(4): e.I(f'v_cvt_pk_bf16_f32 v{E2+i}, v{D2+2*i}, v{D2+2*i+1}')
        for i in range(4):
            e.I(f'v_lshlrev_b32 v{D2+2*i}, 16, v{E2+i}')
            e.I(f'v_and_b32 v{D2+2*i+1}, s88, v{E2+i}')
        for i in range(8): e.I(f'v_mul_f32 v{D2+i}, v{D2+i}, v{B2}')
        for i in range(4): e.I(f'v_cvt_pk_bf16_f32 v{DST+i}, v{D2+2*i}, v{D2+2*i+1}')
        e.I('s_lshl_b32 s94, s32, 10')
        e.I('s_add_u32 s94, s94, s57')
        e.I(f'buffer_store_dwordx4 {vr(DST,4)}, v{vL16}, s[8:11], s94 offen sc1')
        return e.l
    LN2 = ln2_code()
    LN2_ST = [1, 2, 3, 4]
    HPUB = 7

    QBUF = [128, 168]
    WBUF = [128, 160]
    def top(k):
        p.I(f's_waitcnt vmcnt({cnt["issued"] - last[k]}) lgkmcnt(0)')
        if st: p.I(f'v_writelane_b32 v0, s60, {k}')
        p.I('s_barrier')
        if st: p.I('s_memrealtime s[60:61]' if os.environ.get('RT') else 's_memtime s[60:61]')
    def q_reads(k, n, e):
        b = QBUF[n % 2]; sl = SLOT(k)
        for t in range(4): p.I(f'v_add_u32 v{CUR+t}, {sl}, v{vAq+t}')
        for kk in range(2): p.I(f'v_xor_b32 v{CUR+4+kk}, {(4*(n%2)+2*kk)*16}, v{vXq}')
        for kk in range(2):
            e.I(f'ds_read_b128 {vr(b+4*kk,4)}, v{CUR+4+kk} offset:{(n//2)*8192}')
            for t in range(4):
                a = b + 8 + 16*kk + 4*t
                e.I(f'ds_read_b64_tr_b16 {vr(a,2)}, v{CUR+t} offset:{kk*16384}')
                e.I(f'ds_read_b64_tr_b16 {vr(a+2,2)}, v{CUR+t} offset:{kk*16384+4096}')
    def q_mfmas(n):
        b = QBUF[n % 2]
        r = []
        for kk in range(2):
            for t in range(4):
                cc = '0' if (n == 0 and kk == 0) else vr(ACC+16*t, 16)
                r.append(f'{MFMA} {vr(ACC+16*t,16)}, {vr(b+8+16*kk+4*t,4)}, {vr(b+4*kk,4)}, {cc}')
        return r
    vAw = 9; vXw = 11
    def w_setup():
        for i in range(4):
            p.I(f'v_xor_b32 v{vDq+i}, {4*i}, v{L}')
            p.I(f'v_lshlrev_b32 v{vDq+i}, 4, v{vDq+i}')
    def w_setup2():
        tr_lane_bits(p, L, 1024, True, 252, 253, 254)
        p.I(f'v_bfe_u32 v254, v{L}, 2, 2')
        p.I('v_lshlrev_b32 v254, 6, v254')
        p.I('s_lshl_b32 s40, s34, 7')
        p.I('v_add_u32 v253, s40, v253')
        for ta in range(2):
            p.I(f'v_add_u32 v255, {64*ta}, v253')
            p.I('v_xor_b32 v255, v255, v254')
            p.I(f'v_add_u32 v{vAw+ta}, v255, v252')
        p.I('s_lshl_b32 s40, s36, 12')
        p.I(f'v_subrev_u32 v{vXw}, s40, v{vXq}')
    def w_reads(k, n, e):
        b = WBUF[n % 2]; sl = SLOT(k)
        for ta in range(2): p.I(f'v_add_u32 v{CUR+ta}, {sl}, v{vAw+ta}')
        for kk in range(2): p.I(f'v_xor_b32 v{CUR+4+kk}, {(4*(n%2)+2*kk)*16}, v{vXw}')
        for kk in range(2):
            for tb in range(2):
                e.I(f'ds_read_b128 {vr(b+16*kk+4*tb,4)}, v{CUR+4+kk} offset:{(n//2)*8192 + tb*4096}')
            for ta in range(2):
                a = b + 16*kk + 8 + 4*ta
                e.I(f'ds_read_b64_tr_b16 {vr(a,2)}, v{CUR+ta} offset:{kk*16384}')
                e.I(f'ds_read_b64_tr_b16 {vr(a+2,2)}, v{CUR+ta} offset:{kk*16384+4096}')
    def w_mfmas(n):
        b = WBUF[n % 2]
        r = []
        for kk in range(2):
            for ta in range(2):
                for tb in range(2):
                    d = ACC + 16*(2*ta+tb)
                    cc = '0' if (n == 0 and kk == 0) else vr(d, 16)
                    r.append(f'{MFMA} {vr(d,16)}, {vr(b+16*kk+8+4*ta,4)}, {vr(b+16*kk+4*tb,4)}, {cc}')
        return r
    def g1_warm(e):
        e.I('s_lshl_b32 s40, s33, 3')
        e.I('s_add_u32 s40, s40, s34')
        e.I(f'v_lshrrev_b32 v252, 2, v{L}')
        e.I(f'v_and_b32 v252, 7, v252')
        e.I('s_mov_b32 s43, 3584')
        e.I('v_mul_lo_u32 v252, v252, s43')
        e.I(f'v_and_b32 v253, 3, v{L}')
        e.I('v_lshlrev_b32 v253, 3, v253')
        e.I('v_add_u32 v253, s32, v253')
        e.I('s_lshr_b32 s55, s32, 1')
        e.I('s_add_u32 s55, s55, 24')
        e.I('v_min_u32 v253, s55, v253')
        e.I('v_lshl_add_u32 v252, v253, 7, v252')
        e.I(f's_mul_i32 s43, s40, {8*3584}')
        e.I('buffer_load_dword v254, v252, s[16:19], s43 offen')

    fixups = []
    def maxtree(Sc):
        r = [f'v_max3_f32 v{vmx}, v{Sc}, v{Sc+1}, v{Sc+2}']
        for q in range(3, 31, 2): r.append(f'v_max3_f32 v{vmx}, v{vmx}, v{Sc+q}, v{Sc+q+1}')
        r.append(f'v_max_f32 v{vmx}, v{vmx}, v{Sc+31}')
        return r
    def t_stage(k, n):
        sl = SLOT(k)
        M = []
        V = []
        if n < 8:
            for kq in range(8): p.I(f'v_add_u32 v{CUR+kq}, {sl}, v{vK+kq}')
        if n > 0:
            for t in range(4): p.I(f'v_add_u32 v{CUR+8+t}, {sl}, v{vV+t}')
        req_pv = [0]*4
        f = 0
        if n < 8:
            Sn = S[n % 2]
            for a in range(2):
                for kq in range(8):
                    stg = STG + 4*(f % 8)
                    cc = ('0' if n == 0 else vr(NM, 16)) if kq == 0 else vr(Sn+16*a, 16)
                    M.append([[f'ds_read_b128 {vr(stg,4)}, v{CUR+kq} offset:{a*8192}'],
                              f'{MFMA} {vr(Sn+16*a,16)}, {vr(stg,4)}, {vr(QB+4*kq,4)}, {cc}', -1])
                    f += 1
        if n > 0:
            Sc = S[(n - 1) % 2]
            for jj in range(4):
                for t in range(4):
                    stg = STG + 4*(f % 8)
                    cc = '0' if (n == 1 and jj == 0) else vr(ACC+16*t, 16)
                    M.append([[f'ds_read_b64_tr_b16 {vr(stg,2)}, v{CUR+8+t} offset:{16384+jj*4096}',
                               f'ds_read_b64_tr_b16 {vr(stg+2,2)}, v{CUR+8+t} offset:{16384+jj*4096+1024}'],
                              f'{MFMA} {vr(ACC+16*t,16)}, {vr(stg,4)}, {vr(Sc+8*jj,4)}, {cc}', jj])
                    f += 1
        D = TD
        for j in range(min(D, len(M))):
            for r in M[j][0]: p.I(r)
        e = Cap()
        if n == 2:
            e0 = Cap(); warm(e0, 'wo'); extra(e, e0)
        if n == 4:
            e0 = Cap()
            e0.I('v_mov_b32 v254, 0')
            e0.I('buffer_load_dword v255, v254, s[96:99], 0 offen sc1')
            extra(e, e0)
        if n == 6:
            p.I('v_readfirstlane_b32 s43, v255')
            p.I('s_cmp_lt_u32 s43, 256')
            p.I('s_cbranch_scc1 L_back_w')
            p.I('s_lshl_b32 s40, s33, 3')
            p.I('s_add_u32 s40, s40, s34')
            p.I(f'v_lshlrev_b32 v253, 7, v{L}')
            p.I('s_lshl_b32 s43, s40, 13')
            p.I('buffer_load_dword v255, v253, s[8:11], s43 offen sc1')
            p.L('L_back_w:')
            e0 = Cap(); g1_warm(e0); extra(e, e0)
        track(k + 2, e)
        V += e.l
        if n > 0:
            if n == 1:
                p.I(f'v_mov_b32 v{vt}, v{vmx}')
                p.I(f'v_permlane32_swap_b32 v{vmx}, v{vt}')
                p.I(f'v_max_f32 v{vmx}, v{vmx}, v{vt}')
                for r in range(16): p.I(f'v_sub_f32 v{NM+r}, 0, v{vmx}')
                p.I(f'v_mov_b32 v{vl}, 0')
                for r in range(32): V.append(f'v_sub_f32 v{Sc+r}, v{Sc+r}, v{vmx}')
            else:
                p.I(f'v_cmp_lt_f32 vcc, s51, v{vmx}')
                p.I(f's_cbranch_vccnz L_fix{n}')
                p.L(f'L_back{n}:')
                fixups.append((n, Sc))
            for jj in range(4):
                r0 = Sc + 8*jj
                for r in range(8): V.append(f'v_exp_f32 v{r0+r}, v{r0+r}')
                for r in range(8): V.append(f'v_add_f32 v{vl}, v{vl}, v{r0+r}')
                for r in range(4): V.append(f'v_cvt_pk_bf16_f32 v{r0+r}, v{r0+2*r}, v{r0+2*r+1}')
                req_pv[jj] = len(V)
        nv0 = len(V)
        if n < 8: V += maxtree(S[n % 2])
        vpos = 0
        nm = len(M)
        for j in range(nm):
            need = req_pv[M[j][2]] if M[j][2] >= 0 else 0
            while vpos < need:
                p.I(V[vpos]); vpos += 1
            p.I(M[j][1])
            if j + D < nm:
                for r in M[j+D][0]: p.I(r)
            target = -(-(j+1) * len(V) // nm)
            if j < 17: target = min(target, nv0)
            while vpos < target:
                p.I(V[vpos]); vpos += 1
        while vpos < len(V):
            p.I(V[vpos]); vpos += 1

    for k, (kind, n) in enumerate(stages):
        p.C(f'==== stage {k}: {kind}{n}')
        top(k)
        if kind == 'Q':
            e = Cap()
            if ORD & 1:
                track(k + 2, e); q_reads(k, n, e)
            else:
                q_reads(k, n, e); track(k + 2, e)
            if n in LN2_ST:
                q = LN2_ST.index(n); per = -(-len(LN2) // len(LN2_ST))
                e0 = Cap(); e0.l = LN2[q*per:(q+1)*per]; extra(e, e0)
            if n > 0: merge(p, q_mfmas(n - 1), e.l)
            else:
                for t in e.l: p.I(t)
            if n == 14: w_setup()
            if n == HPUB:
                p.I('s_cmp_lg_u32 s34, 0')
                p.I('s_cbranch_scc1 L_back_h')
                p.I('v_mov_b32 v252, 0')
                p.I('v_mov_b32 v253, 1')
                p.I('s_mov_b64 exec, 1')
                p.I('buffer_atomic_add v253, v252, s[96:99], 0 offen sc1')
                p.I('s_mov_b64 exec, -1')
                p.L('L_back_h:')
        elif kind == 'T':
            if n == 0:
                if PRIO:
                    p.I('s_cmp_lt_u32 s34, 4')
                    p.I('s_cbranch_scc1 L_back_pr')
                    p.I('s_setprio 1')
                    p.L('L_back_pr:')
                for t in q_mfmas(15): p.I(t)
                w_setup2()
                for r in range(64): p.I(f'v_mul_f32 v{ACC+r}, s50, v{ACC+r}')
                for t in range(4):
                    for tp in range(2):
                        for d in range(4):
                            r = ACC + 16*t + 8*tp + 2*d
                            p.I(f'v_cvt_pk_bf16_f32 v{QB+4*(2*t+tp)+d}, v{r}, v{r+1}')
            t_stage(k, n)
            if n == 8:
                p.I(f'v_mov_b32 v{vt}, v{vl}')
                p.I(f'v_permlane32_swap_b32 v{vl}, v{vt}')
                p.I(f'v_add_f32 v{vl}, v{vl}, v{vt}')
                p.I(f'v_rcp_f32 v{vl}, v{vl}')
                p.I('s_lshl_b32 s40, s35, 14')
                p.I(f'v_add_u32 v252, s40, v{vXq}')
                for t in range(4):
                    for tp in range(2):
                        r = ACC + 16*t + 8*tp
                        o = 128 + 4*(2*t+tp)
                        for j in range(8): p.I(f'v_mul_f32 v{r+j}, v{r+j}, v{vl}')
                        for d in range(4): p.I(f'v_cvt_pk_bf16_f32 v{o+d}, v{r+2*d}, v{r+2*d+1}')
                        p.I(f'v_xor_b32 v{CUR+2*t+tp}, {(4*(t%2)+2*tp)*16}, v252')
                        p.I(f'ds_write_b128 v{CUR+2*t+tp}, {vr(o,4)} offset:{(t//2)*8192}')
        else:
            e = Cap()
            if ORD & 1:
                track(k + 2, e); w_reads(k, n, e)
            else:
                w_reads(k, n, e); track(k + 2, e)
            if n > 0: merge(p, w_mfmas(n - 1), e.l)
            else:
                for t in e.l: p.I(t)
    for t in w_mfmas(15): p.I(t)
    p.I('s_lshl_b32 s40, s32, 21')
    p.I('s_lshl_b32 s43, s33, 16')
    p.I('s_add_u32 s40, s40, s43')
    p.I('s_add_u32 s40, s40, s41')
    p.I('s_add_u32 s43, s40, 32768')
    for ta in range(2):
        for tb in range(2):
            for tp in range(2):
                r = ACC + 16*(2*ta+tb) + 8*tp
                o = 128 + 4*(4*ta+2*tb+tp)
                for d in range(4): p.I(f'v_cvt_pk_bf16_f32 v{o+d}, v{r+2*d}, v{r+2*d+1}')
                p.I(f'buffer_store_dwordx4 {vr(o,4)}, v{vL16}, s[28:31], s{43 if tb else 40} offen offset:{(4*ta+2*tp)*512}{PART_SC}')
    if st: stamp_tail(p, 41)
    p.I('s_endpgm')
    for n, Sc in fixups:
        p.L(f'L_fix{n}:')
        p.I('s_nop 15')
        p.I(f'v_mov_b32 v{vt}, v{vmx}')
        p.I(f'v_permlane32_swap_b32 v{vmx}, v{vt}')
        p.I(f'v_max3_f32 v{vmx}, v{vmx}, v{vt}, 0')
        p.I(f'v_sub_f32 v{va}, 0, v{vmx}')
        p.I(f'v_exp_f32 v{va}, v{va}')
        for r in range(32): p.I(f'v_sub_f32 v{Sc+r}, v{Sc+r}, v{vmx}')
        for r in range(16): p.I(f'v_sub_f32 v{NM+r}, v{NM+r}, v{vmx}')
        p.I(f'v_mul_f32 v{vl}, v{vl}, v{va}')
        for r in range(64): p.I(f'v_mul_f32 v{ACC+r}, v{ACC+r}, v{va}')
        p.I('s_nop 3')
        p.I(f's_branch L_back{n}')

    p.L('L_gemm1:')
    p.I('s_sub_u32 s3, s2, 256')
    p.I('s_cmp_ge_u32 s3, 224')
    p.I('s_cbranch_scc1 L_main_done')
    p.I('s_and_b32 s40, s3, 7')
    p.I('s_lshr_b32 s41, s3, 3')
    p.I('s_and_b32 s32, s41, 7')
    p.I('s_and_b32 s33, s41, 24')
    p.I('s_add_u32 s33, s33, s40')
    p.I('s_lshr_b32 s42, s40, 1')
    p.I('s_add_u32 s42, s42, 24')
    p.I('s_and_b32 s43, s40, 1')
    p.I('s_lshl_b32 s43, s43, 2')
    p.I('s_add_u32 s43, s43, s32')
    p.I('s_cmp_ge_u32 s41, 24')
    p.I('s_cselect_b32 s33, s42, s33')
    p.I('s_cselect_b32 s32, s43, s32')
    p.I('s_load_dwordx4 s[4:7], s[0:1], 48')
    p.I('s_load_dwordx2 s[50:51], s[0:1], 64')
    p.I('s_load_dwordx4 s[92:95], s[0:1], 88')
    lane_setup(p)
    p.I('s_waitcnt lgkmcnt(0)')
    p.I('s_mov_b32 s48, s94')
    p.I('s_mov_b32 s49, s95')
    srd(p, 96, 92, 93, 256)
    srd(p, 8, 4, 5, 2048*1792*2)
    srd(p, 12, 48, 49, 2 << 20, WS_H)
    srd(p, 16, 6, 7, 1792*2)
    srd(p, 20, 48, 49, U_BYTES, WS_U)
    srd(p, 24, 50, 51, 1792*2048*2)
    p.I(f's_mul_i32 s44, s34, {16*3584}')
    p.I('s_lshl_b32 s40, s33, 7')
    p.I('s_add_u32 s44, s44, s40')
    p.I('s_lshl_b32 s45, s34, 14')
    p.I('s_lshl_b32 s40, s32, 7')
    p.I('s_add_u32 s45, s45, s40')
    def g1_hooks(e, n):
        if n == -1:
            e.I('s_lshl_b32 s40, s33, 7')
            e.I('s_lshl_b32 s41, s35, 6')
            e.I('s_add_u32 s40, s40, s41')
            e.I('s_lshl_b32 s41, s37, 5')
            e.I('s_add_u32 s46, s40, s41')
            e.I('v_lshrrev_b32 v252, 5, v1')
            e.I('v_lshlrev_b32 v20, 4, v252')
            e.I('buffer_load_dwordx4 v[16:19], v20, s[16:19], s46 offen')
        if n == 15:
            e.I('s_lshr_b32 s42, s3, 3')
            e.I('s_lshl_b32 s42, s42, 3')
            e.I('s_add_u32 s42, s42, s34')
            e.I('s_lshl_b32 s42, s42, 15')
            e.I('s_and_b32 s43, s3, 3')
            e.I('s_lshl_b32 s43, s43, 10')
            e.I('s_add_u32 s42, s42, s43')
            e.I('v_lshrrev_b32 v252, 3, v1')
            e.I('v_and_b32 v253, 7, v1')
            e.I('v_lshlrev_b32 v253, 7, v253')
            e.I('v_lshl_add_u32 v252, v252, 12, v253')
            e.I('buffer_load_dword v22, v252, s[24:27], s42 offen')
    def g1_gate(ph):
        if ph == 0:
            p.I('v_mov_b32 v24, 0')
            p.I('buffer_load_dword v25, v24, s[96:99], 0 offen sc1')
        else:
            p.I('s_waitcnt vmcnt(8)')
            p.L('L_g1_poll:')
            p.I('v_readfirstlane_b32 s40, v25')
            p.I('s_cmp_ge_u32 s40, 256')
            p.I('s_cbranch_scc1 L_g1_go')
            p.I('s_sleep 8')
            p.I('buffer_load_dword v25, v24, s[96:99], 0 offen sc1')
            p.I('s_waitcnt vmcnt(0)')
            p.I('s_branch L_g1_poll')
            p.L('L_g1_go:')
    gemm64(p, 'g1', 16, 'tr', 8, 12, 3584, 1024, 44, 45, 128*3584, 128*1024, g1_hooks, g1_gate, ' sc1')
    p.I('s_mov_b32 s40, 0xffff0000')
    k0 = math.sqrt(2.0/math.pi)
    p.I(f's_mov_b32 s41, {f32hex(-2.0*k0*LOG2E)}')
    p.I(f's_mov_b32 s42, {f32hex(-2.0*k0*LOG2E*0.044715)}')
    for i in range(4):
        p.I(f'v_lshlrev_b32 v{72+2*i}, 16, v{16+i}')
        p.I(f'v_and_b32 v{72+2*i+1}, s40, v{16+i}')
    for j in range(8): p.I(f'v_add_f32 v{64+j}, v{64+j}, v{72+j}')
    for j in range(8): p.I(f'v_mul_f32 v{72+j}, v{64+j}, v{64+j}')
    p.I('v_mov_b32 v21, s41')
    for j in range(8): p.I(f'v_fma_f32 v{72+j}, v{72+j}, s42, v21')
    for j in range(8): p.I(f'v_mul_f32 v{72+j}, v{72+j}, v{64+j}')
    for j in range(8): p.I(f'v_exp_f32 v{72+j}, v{72+j}')
    for j in range(8): p.I(f'v_add_f32 v{72+j}, 1.0, v{72+j}')
    for j in range(8): p.I(f'v_rcp_f32 v{72+j}, v{72+j}')
    for j in range(8): p.I(f'v_mul_f32 v{64+j}, v{64+j}, v{72+j}')
    for d in range(4): p.I(f'v_cvt_pk_bf16_f32 v{80+d}, v{64+2*d}, v{64+2*d+1}')
    p.I('v_and_b32 v252, 31, v1')
    p.I('s_lshl_b32 s40, s32, 6')
    p.I('s_lshl_b32 s41, s36, 5')
    p.I('s_add_u32 s40, s40, s41')
    p.I('v_add_u32 v252, s40, v252')
    p.I('s_mov_b32 s41, 3584')
    p.I('v_mul_lo_u32 v252, v252, s41')
    p.I('v_add_u32 v252, v252, v20')
    p.I('buffer_store_dwordx4 v[80:83], v252, s[20:23], s46 offen')
    if STAMPS and STAG in ('g1', 'both'): stamp_tail(p, 16)
    p.L('L_main_done:')
    p.I('s_endpgm')
    return p.finalize()

def gen_final():
    p = Prog()
    p.I('s_cmp_ge_u32 s2, 256')
    p.I('s_cbranch_scc1 L_fin_done')
    p.I('s_lshr_b32 s3, s2, 3')
    p.I('s_bfe_u32 s32, s2, 0x10002')
    p.I('s_lshl_b32 s32, s32, 2')
    p.I('s_lshr_b32 s33, s3, 3')
    p.I('s_add_u32 s32, s32, s33')
    p.I('s_and_b32 s33, s2, 3')
    p.I('s_lshl_b32 s33, s33, 3')
    p.I('s_and_b32 s40, s3, 7')
    p.I('s_add_u32 s33, s33, s40')
    p.I('s_load_dwordx2 s[4:5], s[0:1], 0')
    p.I('s_load_dwordx4 s[44:47], s[0:1], 64')
    p.I('s_load_dwordx2 s[6:7], s[0:1], 80')
    p.I('s_load_dwordx2 s[48:49], s[0:1], 96')
    lane_setup(p)
    p.I('s_waitcnt lgkmcnt(0)')
    srd(p, 8, 48, 49, U_BYTES, WS_U)
    srd(p, 12, 44, 45, 1792*2048*2)
    srd(p, 16, 46, 47, 2048*2)
    srd(p, 20, 4, 5, 2 << 20)
    srd(p, 24, 6, 7, 2 << 20)
    srd(p, 28, 48, 49, 16 << 20, WS_PART)
    p.I('s_lshl_b32 s40, s32, 6')
    p.I('s_lshl_b32 s41, s34, 3')
    p.I('s_add_u32 s40, s40, s41')
    p.I('s_mul_i32 s52, s40, 3584')
    p.I('s_lshl_b32 s53, s34, 16')
    p.I('s_lshl_b32 s40, s33, 7')
    p.I('s_add_u32 s53, s53, s40')
    def fin_hooks(e, n):
        if n == -1:
            e.I('s_bfe_u32 s40, s2, 0x10002')
            e.I('s_lshl_b32 s40, s40, 8')
            e.I('s_lshl_b32 s41, s3, 3')
            e.I('s_add_u32 s40, s40, s41')
            e.I('s_add_u32 s40, s40, s34')
            e.I('s_mul_i32 s40, s40, 3584')
            e.I('v_min_u32 v252, 27, v1')
            e.I('v_lshlrev_b32 v252, 7, v252')
            e.I('buffer_load_dword v23, v252, s[8:11], s40 offen')
            e.I('v_and_b32 v252, 31, v1')
            e.I('s_lshl_b32 s40, s33, 6')
            e.I('s_lshl_b32 s41, s36, 5')
            e.I('s_add_u32 s55, s40, s41')
            e.I('v_add_u32 v253, s55, v252')
            e.I('v_lshlrev_b32 v24, 1, v253')
            e.I('s_lshl_b32 s41, s32, 7')
            e.I('s_lshl_b32 s42, s35, 6')
            e.I('s_add_u32 s41, s41, s42')
            e.I('s_lshl_b32 s42, s37, 5')
            e.I('s_add_u32 s54, s41, s42')
            e.I('v_lshrrev_b32 v254, 5, v1')
            e.I('v_lshlrev_b32 v254, 4, v254')
            e.I('v_lshl_add_u32 v21, v253, 10, v254')
            e.I('s_lshl_b32 s55, s55, 10')
            e.I('s_lshl_b32 s41, s54, 5')
            e.I('s_add_u32 s55, s55, s41')
            e.I('v_lshlrev_b32 v25, 4, v1')
        if P0 <= n < P0 + 8:
            g = n - P0
            e.I(f's_add_u32 s42, s55, {g << 21}')
            e.I(f'buffer_load_dwordx4 {vr(96+4*g,4)}, v25, s[28:31], s42 offen')
        if n == 1:
            e.I('buffer_load_ushort v20, v24, s[16:19], 0 offen')
            e.I('buffer_load_dwordx4 v[16:19], v21, s[20:23], s54 offen')
    gemm64(p, 'g2', 14, 'row', 8, 12, 3584, 4096, 52, 53, 256, 128*4096, fin_hooks)
    p.I('s_mov_b32 s40, 0xffff0000')
    p.I(f's_mov_b32 s41, {f32hex(-LOG2E)}')
    p.I('v_lshlrev_b32 v20, 16, v20')
    for j in range(8): p.I(f'v_add_f32 v{64+j}, v{64+j}, v20')
    for j in range(8): p.I(f'v_mul_f32 v{72+j}, s41, v{64+j}')
    for j in range(8): p.I(f'v_exp_f32 v{72+j}, v{72+j}')
    for j in range(8): p.I(f'v_add_f32 v{72+j}, 1.0, v{72+j}')
    for j in range(8): p.I(f'v_rcp_f32 v{72+j}, v{72+j}')
    for j in range(8): p.I(f'v_mul_f32 v{64+j}, v{64+j}, v{72+j}')
    for g in range(8):
        for i in range(4):
            if g == 0:
                p.I(f'v_lshlrev_b32 v{72+2*i}, 16, v{96+i}')
                p.I(f'v_and_b32 v{72+2*i+1}, s40, v{96+i}')
            else:
                p.I(f'v_lshlrev_b32 v{80+2*i}, 16, v{96+4*g+i}')
                p.I(f'v_and_b32 v{80+2*i+1}, s40, v{96+4*g+i}')
        if g:
            for j in range(8): p.I(f'v_add_f32 v{72+j}, v{72+j}, v{80+j}')
    for i in range(4):
        p.I(f'v_lshlrev_b32 v{80+2*i}, 16, v{16+i}')
        p.I(f'v_and_b32 v{80+2*i+1}, s40, v{16+i}')
    for j in range(8): p.I(f'v_fma_f32 v{80+j}, v{72+j}, v{64+j}, v{80+j}')
    for d in range(4): p.I(f'v_cvt_pk_bf16_f32 v{88+d}, v{80+2*d}, v{80+2*d+1}')
    p.I('buffer_store_dwordx4 v[88:91], v21, s[24:27], s54 offen')
    if STAMPS and STAG == 'g2': stamp_tail(p, 14)
    p.L('L_fin_done:')
    p.I('s_endpgm')
    return p.finalize()

def kd(name, vgpr, sgpr=102):
    return f""".p2align 6
.amdhsa_kernel {name}
  .amdhsa_next_free_vgpr {vgpr}
  .amdhsa_next_free_sgpr {sgpr}
  .amdhsa_accum_offset {vgpr}
  .amdhsa_group_segment_fixed_size 0
  .amdhsa_kernarg_size 104
  .amdhsa_user_sgpr_count 2
  .amdhsa_user_sgpr_kernarg_segment_ptr 1
  .amdhsa_system_sgpr_workgroup_id_x 1
.end_amdhsa_kernel
"""

def main(path):
    hdr = open('recurrent_scan__sliding_block_cached__mixer_token_mlp__prompt.s.ref').read().split('; Override launch')[0]
    out = [hdr.rstrip('\n')]
    out.append('; @launch kernel=main_kernel grid=(480,1,1) block=(512,1,1) lds=163840')
    out.append('; @launch kernel=final_kernel grid=(256,1,1) block=(512,1,1) lds=163840')
    out.append('.amdgcn_target "amdgcn-amd-amdhsa--gfx950"\n.text')
    for name, body in (('main_kernel', gen_main()), ('final_kernel', gen_final())):
        out.append(f'.globl {name}\n.p2align 8\n.type {name},@function\n{name}:')
        out.append(body)
    out.append('.section .rodata,"a"')
    out.append(kd('main_kernel', 256, 102))
    out.append(kd('final_kernel', 256, 80))
    open(path, 'w').write('\n'.join(out))

if __name__ == '__main__':
    main(sys.argv[1] if len(sys.argv) > 1 else 'recurrent_scan__sliding_block_cached__mixer_token_mlp__prompt.s')
```
